```python
import torch

def _softmax(x, axis=-1):
    return torch.softmax(x, dim=axis)
def _gelu(x):
    return torch.nn.functional.gelu(x, approximate="tanh")
def _silu(x):
    return torch.nn.functional.silu(x)
def _sigmoid(x):
    return torch.sigmoid(x)
def _layernorm(x, axis=-1, eps=1e-5):
    m = x.mean(dim=axis, keepdim=True)
    v = x.var(dim=axis, keepdim=True, unbiased=False)
    return (x - m) / torch.sqrt(v + eps)
def _scatter_add(tgt, idx, src, axis=0):
    return tgt.clone().index_add_(axis, idx, src)
def _segment_sum(src, seg, n):
    out = torch.zeros((n,) + src.shape[1:], dtype=src.dtype)
    return out.index_add_(0, seg, src)
def _pad(x, pw):
    flat = tuple(v for pair in reversed(pw) for v in pair)
    return torch.nn.functional.pad(x, flat)

kernel_name = 'gated_mix__ssm_conv_s4d__swiglu_ffn__prompt'

def setup_inputs():

    _w = (lambda a: (lambda t: t.to(torch.bfloat16) if t.is_floating_point() else t)(torch.as_tensor(a)))
    def _A_setup():
        Bsz, L, D, N = 1, 2048, 576, 128
        return {
            "u": _w((lambda *s: torch.randn(*s, dtype=torch.bfloat16) * 0.05)(Bsz, L, D)),
            "log_A_real": _w((lambda *s: torch.randn(*s, dtype=torch.bfloat16) * 6.4)(D, N) * 0.5),
            "A_imag": _w((lambda *s: torch.randn(*s, dtype=torch.bfloat16) * 0.05)(D, N) * 3.14),
            "C_real": _w((lambda *s: torch.randn(*s, dtype=torch.bfloat16) * 0.05)(D, N) / N ** 0.5),
            "C_imag": _w((lambda *s: torch.randn(*s, dtype=torch.bfloat16) * 0.05)(D, N) / N ** 0.5),
            "log_dt": _w((lambda *s: torch.randn(*s, dtype=torch.bfloat16) * 0.05)(D) * 0.5 - 4.0),
            "D_skip": _w((lambda *s: torch.randn(*s, dtype=torch.bfloat16) * 0.05)(D)),
        }
    _A_in = _A_setup()

    def _B_setup():
        B, S, D, F = 1, 2048, 576, 4608
        return {
            "x": _w((lambda *s: torch.randn(*s, dtype=torch.bfloat16) * 0.05)(B, S, D)),
            "w_gate": _w((lambda *s: torch.randn(*s, dtype=torch.bfloat16) * 0.05)(D, F)),
            "w_up": _w((lambda *s: torch.randn(*s, dtype=torch.bfloat16) * 0.05)(D, F)),
            "w_down": _w((lambda *s: torch.randn(*s, dtype=torch.bfloat16) * 0.05)(F, D)),
        }
    _B_in = _B_setup()

    return {
        "A_u": _A_in["u"],
        "A_log_A_real": _A_in["log_A_real"],
        "A_A_imag": _A_in["A_imag"],
        "A_C_real": _A_in["C_real"],
        "A_C_imag": _A_in["C_imag"],
        "A_log_dt": _A_in["log_dt"],
        "A_D_skip": _A_in["D_skip"],
        "B_x": _B_in["x"],
        "B_w_gate": _B_in["w_gate"],
        "B_w_up": _B_in["w_up"],
        "B_w_down": _B_in["w_down"],
        "gate_w": _w((lambda *s: torch.randn(*s, dtype=torch.bfloat16) * 0.05)(576) * 16.0),
    }

def reference(A_u, A_log_A_real, A_A_imag, A_C_real, A_C_imag, A_log_dt, A_D_skip, B_x, B_w_gate, B_w_up, B_w_down, gate_w):
    def _A_ref(u, log_A_real, A_imag, C_real, C_imag, log_dt, D_skip):
        L = u.shape[1]
        dt = torch.exp(log_dt)
        A = -torch.exp(log_A_real) + 1j * A_imag
        C = (C_real + 1j * C_imag) * dt[:, None]
        pos = (lambda x, dt: x.to(dt))(torch.arange(L), log_dt.dtype)
        P = torch.exp((A * dt[:, None])[:, :, None] * pos[None, None, :])
        K = 2.0 * torch.einsum("dn,dnl->dl", C, P).real
        L2 = 2 * L
        u_t = (lambda x, *d: x.permute(*d))(u, 0, 2, 1)
        Kf = (lambda x, *a, **k: torch.fft.rfft(x.float(), *a, **k))(K, L2)
        Uf = (lambda x, *a, **k: torch.fft.rfft(x.float(), *a, **k))(u_t, L2)
        y = (lambda x, *a, **k: torch.fft.irfft(x, *a, **k).to(torch.bfloat16))(Uf * Kf[None, :, :], L2)[:, :, :L]
        y = (lambda x, *d: x.permute(*d))(y, 0, 2, 1)
        return y + u * D_skip[None, None, :]

    def _B_ref(x, w_gate, w_up, w_down):
        g = _silu(x @ w_gate)
        u = x @ w_up
        return (g * u) @ w_down

    x = A_u
    g = _sigmoid((x * gate_w).sum(-1, keepdims=True))
    a = _A_ref(x, A_log_A_real, A_A_imag, A_C_real, A_C_imag, A_log_dt, A_D_skip)
    b = _B_ref(x, B_w_gate, B_w_up, B_w_down)
    return g * a + (1 - g) * b
```

```python
import sys
sys.path.insert(0, "tools")
from sched import *
from asmlib import *

class Alloc:
    def __init__(self, pfx, start, end):
        self.p = pfx; self.n = start; self.end = end; self.names = {}
    def __call__(self, name, cnt=1, align=1):
        self.n = -(-self.n // align) * align
        r = self.n; self.n += cnt
        assert self.n <= self.end, f"out of {self.p} regs at {name}: {self.n}"
        self.names[name] = (r, cnt)
        return r
def vr(b, n=1, p="v"):
    return f"{p}{b}" if n == 1 else f"{p}[{b}:{b+n-1}]"

KA = dict(u=0, lar=8, aim=16, cre=24, cim=32, ldt=40, dsk=48, bx=56, wg=64, wu=72, wd=80, gw=88, out=96, dbg=104, ws=112)
SZ = dict(u=2359296, lar=147456, aim=147456, cre=147456, cim=147456, ldt=1152, dsk=1152, wg=5308416, wu=5308416, wd=5308416, gw=1152, out=2359296, dbg=256, ws=268435456)
WS_STAMP = 0
WS_H = 0x100000
WS_P = 0x1400000
WS_Y = 0x2800000
WS_G = 0x2C00000

def srd(s, base, name):
    s.emit(f"s_load_dwordx2 s[{base}:{base+1}], s[0:1], {KA[name]}")
    s.emit(f"s_mov_b32 s{base+2}, {SZ[name]}")
    s.emit(f"s_mov_b32 s{base+3}, 0x00020000")

def finish(s, name=""):
    ins, probs = check(s.ins, fix=True)
    if probs:
        print(f"[{name}] {len(probs)} hazards padded, e.g.", probs[:4], file=sys.stderr)
    s.ins = ins
    return s.text()
```

```python
from common import *
import struct
def f2u(x): return "0x%08x" % struct.unpack("<I", struct.pack("<f", x))[0]
LOG2E = 1.4426950408889634
ROW = 544; TABSZ = 57 * ROW; KTSZ = 8320; URSZ = 4576; CTSZ = 3072

def gen_k0(stamps=False, sc=""):
    s = Stream(); V = Alloc("v", 1, 256); S = Alloc("s", 3, 100)
    TAB = 0; CT = 3 * TABSZ; KT = CT + 3 * CTSZ; UR = KT + 3 * KTSZ; LDS = UR + 3 * URSZ
    sX = S("X", 4, 4); sWS = S("WS", 4, 4); sP = [S(n, 4, 4) for n in ("lar", "aim", "cre", "cim", "ldt", "dsk", "gw")]
    sw = S("wave"); st0 = S("t0"); st1 = S("t1"); ssh = S("sh"); sL2 = S("log2e"); sHi = S("himask"); sSelL = S("selL"); sSelH = S("selH")
    sSt = S("stamps", 32, 2) if stamps else None
    vl = V("lane"); va = V("a"); vb = V("b"); vc = V("c")
    vPar = V("par", 12); vDt = V("dt", 3); vDs = V("dsk")
    vU = V("u", 16, 2); vGx = V("gx", 12, 4); vGw = V("gw", 12, 4)
    vZ = V("z", 12, 2); vC = V("cc", 12, 2)
    vW = V("work", 160, 4)
    nst = [0]
    def stamp():
        if stamps:
            s.emit(f"s_memrealtime s[{sSt + 2 * nst[0]}:{sSt + 2 * nst[0] + 1}]"); nst[0] += 1
    stamp()
    s.raw("""
    s_cmp_ge_u32 s2, 256
    s_cbranch_scc1 K0_done
    """)
    srd(s, sX, "u"); srd(s, sWS, "ws")
    for b, n in zip(sP, ("lar", "aim", "cre", "cim", "ldt", "dsk", "gw")): srd(s, b, n)
    s.raw(f"""
    v_lshrrev_b32 v{va}, 6, v0
    v_and_b32 v{vl}, 63, v0
    v_readfirstlane_b32 s{sw}, v{va}
    s_mov_b32 s{sL2}, {f2u(LOG2E)}
    s_mov_b32 s{sHi}, 0xffff0000
    s_mov_b32 s{sSelL}, 0x05040100
    s_mov_b32 s{sSelH}, 0x07060302
    v_lshlrev_b32 v{va}, 2, v{vl}
    s_mul_i32 s{st0}, s2, 768
    s_mul_i32 s{st1}, s2, 6
    v_mov_b32 v{vb}, 0
    s_waitcnt lgkmcnt(0)
    """)
    pI = []
    for ch in range(3):
        pI.append(s.emit(f"buffer_load_ushort v{vDt+ch}, v{vb}, s[{sP[4]}:{sP[4]+3}], s{st1} offen offset:{2*ch}"))
        for k in range(4):
            pI.append(s.emit(f"buffer_load_dword v{vPar+4*ch+k}, v{va}, s[{sP[k]}:{sP[k]+3}], s{st0} offen offset:{256*ch}"))
    s.raw(f"""
    s_lshl_b32 s{st0}, s{sw}, 1
    s_add_u32 s{st0}, s{st0}, s{st1}
    """)
    dsI = s.emit(f"buffer_load_ushort v{vDs}, v{vb}, s[{sP[5]}:{sP[5]+3}], s{st0} offen")
    s.raw(f"""
    v_and_b32 v{va}, 31, v{vl}
    v_mul_u32_u24 v{va}, 12, v{va}
    v_lshrrev_b32 v{vb}, 5, v0
    v_mul_u32_u24 v{vc}, 1152, v{vb}
    v_add_u32 v{vc}, v{vc}, v{va}
    s_mul_i32 s{st0}, s2, {8*1152}
    """)
    gI = []
    for i in range(3):
        gI.append(s.emit(f"buffer_load_dwordx3 {vr(vGx+4*i,3)}, v{vc}, s[{sX}:{sX+3}], s{st0} offen offset:{384*i}"))
        gI.append(s.emit(f"buffer_load_dwordx3 {vr(vGw+4*i,3)}, v{va}, s[{sP[6]}:{sP[6]+3}], 0 offen offset:{384*i}"))
    s.raw(f"""
    v_mul_u32_u24 v{va}, {8*1152}, v0
    s_and_b32 s{st0}, s{st1}, 0xfffc
    s_cmp_ge_u32 s2, 192
    s_cselect_b32 s{st0}, 0x1000000, s{st0}
    s_and_b32 s{ssh}, s2, 1
    s_lshl_b32 s{ssh}, s{ssh}, 4
    v_add_u32 v{vc}, {4*1152}, v{va}
    """)
    uI = []
    for i in range(8):
        uI.append(s.emit(f"buffer_load_dwordx2 {vr(vU+2*i,2)}, v{va if i < 4 else vc}, s[{sX}:{sX+3}], s{st0} offen offset:{1152*(i%4)}"))
    s.need(gI[-1])
    t = vW
    s.emit(f"v_dot2_f32_bf16 v{t}, v{vGx}, v{vGw}, 0")
    for i in range(1, 9):
        o = 4 * (i // 3) + i % 3
        s.emit(f"v_dot2_f32_bf16 v{t}, v{vGx+o}, v{vGw+o}, v{t}")
    s.emit("s_nop 2")
    for r in (8, 4, 2, 1):
        s.emit(f"v_add_f32_dpp v{t}, v{t}, v{t} row_ror:{r} row_mask:0xf bank_mask:0xf")
    s.raw(f"""
    v_mov_b32 v{t+1}, v{t}
    v_permlane16_swap_b32 v{t+1}, v{t}
    v_add_f32 v{t}, v{t}, v{t+1}
    v_mul_f32 v{t}, {f2u(-LOG2E)}, v{t}
    v_exp_f32 v{t}, v{t}
    v_add_f32 v{t}, 1.0, v{t}
    v_rcp_f32 v{t}, v{t}
    v_lshlrev_b32 v{vb}, 2, v{vb}
    s_lshl_b32 s{st0}, s2, 5
    s_add_u32 s{st0}, s{st0}, {WS_G}
    buffer_store_dword v{t}, v{vb}, s[{sWS}:{sWS+3}], s{st0} offen {sc}
    s_cmp_ge_u32 s2, 192
    s_cbranch_scc1 K0_end
    """)
    stamp()
    for ch in range(3):
        lar, aim, cre, cim = (vPar + 4 * ch + k for k in range(4)); dt = vDt + ch
        z = vZ + 4 * ch; c = vC + 4 * ch
        s.raw(f"""
        v_lshlrev_b32 v{dt}, 16, v{dt}
        v_lshlrev_b32 v{t}, 16, v{lar}
        v_and_b32 v{t+1}, s{sHi}, v{lar}
        v_mul_f32 v{dt}, s{sL2}, v{dt}
        v_mul_f32 v{t}, s{sL2}, v{t}
        v_mul_f32 v{t+1}, s{sL2}, v{t+1}
        v_exp_f32 v{dt}, v{dt}
        v_exp_f32 v{t}, v{t}
        v_exp_f32 v{t+1}, v{t+1}
        v_lshlrev_b32 v{z+1}, 16, v{aim}
        v_cvt_pk_bf16_f32 v{dt}, v{dt}, v{dt}
        v_cvt_pk_bf16_f32 v{t}, v{t}, v{t+1}
        v_and_b32 v{z+3}, s{sHi}, v{aim}
        v_and_b32 v{dt}, s{sHi}, v{dt}
        v_lshlrev_b32 v{z}, 16, v{t}
        v_and_b32 v{z+2}, s{sHi}, v{t}
        v_lshlrev_b32 v{c}, 16, v{cre}
        v_lshlrev_b32 v{c+1}, 16, v{cim}
        v_and_b32 v{c+2}, s{sHi}, v{cre}
        v_and_b32 v{c+3}, s{sHi}, v{cim}
        """)
        for k in range(4): s.emit(f"v_mul_f32 v{z+k}, v{dt}, v{z+k}")
        s.emit(f"v_add_f32 v{dt}, v{dt}, v{dt}")
        for k in range(4): s.emit(f"v_mul_f32 v{z+k}, {f2u(-LOG2E) if k % 2 == 0 else '0.15915494'}, v{z+k}")
        for k in range(4): s.emit(f"v_mul_f32 v{c+k}, v{dt}, v{c+k}")
    vTA = va
    s.raw(f"""
    v_lshlrev_b32 v{vTA}, 3, v{vl}
    v_add_u32 v{vb}, {TABSZ*2}, v{vTA}
    s_cmp_eq_u32 s{sw}, 1
    s_cbranch_scc1 K0_p1
    s_cmp_eq_u32 s{sw}, 2
    s_cbranch_scc1 K0_p2
    s_cmp_eq_u32 s{sw}, 3
    s_cbranch_scc1 K0_p3
    """)
    pool = [vW + 4 * i for i in range(12)]; OUT = vW + 48; oc = [0]; TMP = vW + 64
    def cexp(d, ch, p):
        z = vZ + 4 * ch
        for k in range(4): s.emit(f"v_mul_f32 v{TMP+k}, {f2u(float(p))}, v{z+k}")
        for m in (0, 2): s.emit(f"v_fract_f32 v{TMP+m+1}, v{TMP+m+1}")
        for m in (0, 2): s.emit(f"v_exp_f32 v{TMP+m}, v{TMP+m}")
        for m in (0, 2):
            s.emit(f"v_cos_f32 v{d+m}, v{TMP+m+1}"); s.emit(f"v_sin_f32 v{d+m+1}, v{TMP+m+1}")
        for m in (0, 2): s.emit(f"v_pk_mul_f32 {vr(d+m,2)}, {vr(d+m,2)}, {vr(TMP+m,2)} op_sel:[0,0] op_sel_hi:[1,0]")
    def cmul(d, x, w):
        assert d != x and d != w
        for m in (0, 2): s.emit(f"v_pk_mul_f32 {vr(d+m,2)}, {vr(x+m,2)}, {vr(w+m,2)} op_sel:[0,0] op_sel_hi:[1,0]")
        for m in (0, 2): s.emit(f"v_pk_fma_f32 {vr(d+m,2)}, {vr(x+m,2)}, {vr(w+m,2)}, {vr(d+m,2)} op_sel:[1,1,0] op_sel_hi:[0,1,1] neg_lo:[1,0,0]")
    def put(x, ch, row, neg=False):
        o = OUT + 2 * (oc[0] % 8); oc[0] += 1
        n = "-" if neg else ""
        for m in (0, 1): s.emit(f"v_cvt_pk_bf16_f32 v{o+m}, v{x+2*m}, {n}v{x+2*m+1}")
        a, off = (vTA, ch * TABSZ) if ch < 2 else (vb, 0)
        s.emit(f"ds_write_b64 v{a}, {vr(o,2)} offset:{TAB + off + row*ROW}")
    def chain(cur, w, ch, rows, tmp, neg=False):
        for k, r in enumerate(rows):
            d = tmp[k % 2]; cmul(d, cur, w); put(d, ch, r, neg); cur = d
        return cur
    P = pool
    for ch in range(3):
        cexp(P[0], ch, 16); put(vC + 4 * ch, ch, 0, True)
        chain(vC + 4 * ch, P[0], ch, range(1, 16), P[1:3], True)
    s.emit("s_branch K0_join"); s.emit("K0_p1:")
    s.emit(f"v_mov_b32 v{P[3]}, 1.0"); s.emit(f"v_mov_b32 v{P[3]+1}, 0"); s.emit(f"v_mov_b32 v{P[3]+2}, 1.0"); s.emit(f"v_mov_b32 v{P[3]+3}, 0")
    for ch in range(3):
        cexp(P[0], ch, 1); put(P[3], ch, 16); put(P[0], ch, 17)
        chain(P[0], P[0], ch, range(18, 32), P[1:3])
    s.emit("s_branch K0_join"); s.emit("K0_p2:")
    for ch in range(3):
        cexp(P[0], ch, 2); cexp(P[3], ch, 256); put(P[3], ch, 32)
        chain(P[3], P[0], ch, range(33, 40), P[1:3])
        cmul(P[4], P[0], P[0]); cmul(P[5], P[3], P[3]); put(P[5], ch, 40)
        chain(P[5], P[4], ch, range(41, 44), P[1:3])
    s.emit("s_branch K0_join"); s.emit("K0_p3:")
    for ch in range(3):
        cexp(P[0], ch, 4); cexp(P[3], ch, 256)
        cmul(P[4], P[0], P[0]); cmul(P[5], P[3], P[3]); cmul(P[6], P[5], P[3]); put(P[6], ch, 44)
        chain(P[6], P[0], ch, range(45, 48), P[1:3])
        cur = P[6]
        for o in range(5):
            d = P[7 + o % 2]; cmul(d, cur, P[3]); put(d, ch, 48 + 2 * o); cur = d
            if o < 4: cmul(P[1], cur, P[4]); put(P[1], ch, 49 + 2 * o)
    s.emit("K0_join:")
    stamp()
    s.emit("s_waitcnt vmcnt(0)")
    for i in range(8):
        s.emit(f"v_alignbit_b32 v{vU+2*i}, v{vU+2*i+1}, v{vU+2*i}, s{ssh}")
        s.emit(f"v_lshrrev_b32 v{vU+2*i+1}, s{ssh}, v{vU+2*i+1}")
    s.raw(f"""
    v_lshlrev_b32 v{va}, 4, v0
    v_sub_u32 v{va}, {UR + 4080}, v{va}
    """)
    for ch in range(3):
        o = vW + 4 * ch
        for k in range(4):
            lo = vU + 2 * (7 - 2 * k) + (ch >> 1); hi = vU + 2 * (6 - 2 * k) + (ch >> 1)
            s.emit(f"v_perm_b32 v{o+k}, v{hi}, v{lo}, s{sSelH if ch == 1 else sSelL}")
        s.emit(f"ds_write_b128 v{va}, {vr(o,4)} offset:{ch*URSZ}")
    s.raw(f"""
    s_waitcnt lgkmcnt(0)
    s_barrier
    s_cmp_eq_u32 s{sw}, 3
    s_cbranch_scc1 K0_end
    """)
    stamp()
    vKA = V("ka", 4); vUA = V("ua"); vCT = V("ct"); vKT = V("kt")
    FRG = vW + 32; ACC = vW
    s.raw(f"""
    v_and_b32 v{va}, 15, v{vl}
    v_mul_u32_u24 v{vb}, {ROW}, v{va}
    v_and_b32 v{vc}, 48, v{vl}
    s_mul_i32 s{st0}, s{sw}, {TABSZ}
    v_add3_u32 v{vb}, v{vb}, v{vc}, s{st0}
    """)
    rI = {}
    for ks in range(8):
        for tI in range(4):
            rI[(ks, tI)] = s.emit(f"ds_read_b128 {vr(FRG + 16*ks + 4*tI, 4)}, v{vb} offset:{TAB + tI*16*ROW + ks*64}")
        if ks == 2:
            Z = vGx
            for k in range(4): s.emit(f"v_mov_b32 v{Z+k}, 0")
            s.raw(f"""
            s_mul_i32 s{st0}, s{sw}, {URSZ}
            s_add_u32 s{st0}, s{st0}, {UR}
            v_min_u32 v{vUA}, 29, v{vl}
            v_lshl_add_u32 v{vUA}, v{vUA}, 4, s{st0}
            ds_write_b128 v{vUA}, {vr(Z,4)} offset:4096
            v_sub_u32 v{vUA}, 15, v{va}
            v_lshl_add_u32 v{vUA}, v{vUA}, 5, v{vc}
            v_add_u32 v{vUA}, s{st0}, v{vUA}
            s_mul_i32 s{st0}, s{sw}, {KTSZ}
            s_add_u32 s{st0}, s{st0}, {KT}
            v_and_b32 v{vKT}, 1, v{vl}
            v_lshl_add_u32 v{vKA}, v{vKT}, 4, s{st0}
            ds_write_b128 v{vKA}, {vr(Z,4)} offset:0
            ds_write_b128 v{vKA}, {vr(Z,4)} offset:4160
            v_xor_b32 v{vKT}, 1, v{vKT}
            v_mul_u32_u24 v{vKT}, 4160, v{vKT}
            v_add_u32 v{vKA}, 1, v{va}
            v_lshrrev_b32 v{vKA}, 1, v{vKA}
            v_lshl_add_u32 v{vKA}, v{vKA}, 2, v{vc}
            v_add3_u32 v{vKA}, v{vKA}, v{vKT}, s{st0}
            v_add_u32 v{vKA+1}, 1024, v{vKA}
            v_add_u32 v{vKA+2}, 2048, v{vKA}
            v_add_u32 v{vKA+3}, 3072, v{vKA}
            v_mov_b32 v{vKT}, s{st0}
            """)
    for ks in range(8):
        s.need(rI[(ks, 3)])
        for tI in range(3):
            acc = vr(ACC + 4 * tI, 4)
            s.emit(f"v_mfma_f32_16x16x32_bf16 {acc}, {vr(FRG + 16*ks + 4*(tI+1), 4)}, {vr(FRG + 16*ks, 4)}, {'0' if ks == 0 else acc}")
    a0 = vGw; a1 = vGw + 1; a2 = vGw + 2; a3 = vGw + 3
    s.raw(f"""
    s_mul_i32 s{st1}, s{sw}, {CTSZ}
    s_add_u32 s{st1}, s{st1}, {CT}
    v_lshl_add_u32 v{a0}, v{va}, 6, v{vc}             ; (16j+4g)*4
    v_add_u32 v{a0}, s{st1}, v{a0}
    v_lshl_add_u32 v{a1}, v{va}, 5, v{vc}             ; g<2: (8j+4g)*4
    v_lshlrev_b32 v{a3}, 4, v{vc}                     ; 256g
    v_lshl_add_u32 v{a2}, v{va}, 4, v{a3}             ; g>=2: (128+4j+64(g-2))*4 = 16j+256g
    v_cmp_gt_u32 vcc, 32, v{vl}
    v_cndmask_b32 v{a1}, v{a2}, v{a1}, vcc
    v_add_u32 v{a1}, s{st1}, v{a1}
    v_lshl_add_u32 v{a2}, v{va}, 3, v{a3}             ; (2j+64g)*4
    v_add_u32 v{a2}, s{st1}, v{a2}
    v_cmp_eq_u32 vcc, 0, v{vl}
    v_lshlrev_b32 v{vDs}, 16, v{vDs}
    v_cndmask_b32 v{vDs}, 0, v{vDs}, vcc
    v_add_f32 v{ACC}, v{ACC}, v{vDs}
    ds_write_b128 v{a0}, {vr(ACC,4)} offset:0
    ds_write_b128 v{a1}, {vr(ACC+4,4)} offset:1024
    ds_write_b64 v{a2}, {vr(ACC+8,2)} offset:2048
    ds_write_b64 v{a2}, {vr(ACC+10,2)} offset:{2048+128}
    v_lshl_add_u32 v{a0}, v{vl}, 4, s{st1}
    v_lshl_add_u32 v{a1}, v{vl}, 3, s{st1}
    v_cvt_pk_bf16_f32 v{a3}, 0, v{ACC}
    """)
    K = FRG
    r0 = s.emit(f"ds_read_b128 {vr(K,4)}, v{a0} offset:0"); r0 = s.emit(f"ds_read_b32 v{K+4}, v{a0} offset:16")
    rs = []
    for g_ in range(3):
        s.emit(f"ds_read_b64 {vr(K+8+4*g_,2)}, v{a1} offset:{1024+512*g_}")
        rs.append(s.emit(f"ds_read_b32 v{K+10+4*g_}, v{a1} offset:{1024+512*g_+8}"))
    s.raw(f"""
    v_readfirstlane_b32 s{st1}, v{a3}
    v_lshl_add_u32 v{a0}, v{vl}, 3, v{vKT}
    v_lshl_add_u32 v{a1}, v{vl}, 4, v{vKT}
    v_lshl_add_u32 v{a2}, v{vl}, 5, v{vKT}
    v_mov_b32 v{a3}, s{st1}
    ds_write_b32 v{vKT}, v{a3} offset:{4160+28}
    """)
    O = FRG + 32
    def expand(kb, pat0, pat1, addr, dw):
        n = len(pat0)
        for cp, pat in enumerate((pat0, pat1)):
            o = O + 8 * cp + (16 if n == 8 or kb == K + 8 else 0)
            for i, (x, y) in enumerate(pat): s.emit(f"v_cvt_pk_bf16_f32 v{o+i}, v{kb+x}, v{kb+y}")
            if n == 2: s.emit(f"ds_write_b64 v{addr}, {vr(o,2)} offset:{cp*4160 + 4*dw}")
            else:
                for h in range(n // 4): s.emit(f"ds_write_b128 v{addr}, {vr(o+4*h,4)} offset:{cp*4160 + 4*dw + 16*h}")
    s.need(r0); expand(K, [(0,1),(2,3)], [(1,2),(3,4)], a0, 8)
    s.need(rs[0]); expand(K+8, [(0,0),(1,2)], [(0,1),(2,2)], a0, 8+128)
    s.need(rs[1]); expand(K+12, [(0,0),(0,1),(1,1),(2,2)], [(0,0),(1,1),(1,2),(2,2)], a1, 8+256)
    s.need(rs[2]); expand(K+16, [(0,0),(0,0),(0,1),(1,1),(1,1),(1,1),(2,2),(2,2)], [(0,0),(0,0),(1,1),(1,1),(1,1),(1,2),(2,2),(2,2)], a2, 8+512)
    s.emit("s_waitcnt lgkmcnt(0)")
    stamp()
    G = Gapper(s)
    def reads(st):
        b = FRG + 64 * (st % 2); L = []
        for i in range(8):
            for h in range(2):
                o = (i % 2) * 128 + 16 * st + 2 * h
                L.append(f"ds_read2_b32 {vr(b + 4*i + 2*h, 2)}, v{vKA + i//2} offset0:{o} offset1:{o+1}")
            L.append(f"ds_read_b128 {vr(b + 32 + 4*i, 4)}, v{vUA} offset:{512*(7-i) + 64*st}")
        return L
    cur = [s.emit(x) for x in reads(0)]
    s.need(cur[2])
    for st in range(8):
        b = FRG + 64 * (st % 2)
        nx = reads(st + 1) if st < 7 else []
        nxt = []; m = 0
        for J in range(8):
            for q in range(J + 1):
                acc = vr(ACC + 4 * J, 4)
                txt = f"v_mfma_f32_16x16x32_bf16 {acc}, {vr(b + 4*q, 4)}, {vr(b + 32 + 4*(J-q), 4)}, {'0' if st == 0 and q == 0 else acc}"
                sc_ = []
                if q == J:
                    if J < 7: sc_.append(lambda z, i=cur[3*(J+1)+2]: z.need(i))
                    elif st < 7: sc_.append(lambda z, nxt=nxt: z.need(nxt[2]))
                rd = nx[len(nxt)] if (m >= 1 and len(nxt) < len(nx)) else None
                r = G.mfma(txt, sc_, rd)
                if r is not None: nxt.append(r)
                m += 1
        cur = nxt
    stamp()
    s.raw(f"""
    s_mul_i32 s{st0}, s2, 3
    s_add_u32 s{st0}, s{st0}, s{sw}
    s_lshl_b32 s{st0}, s{st0}, 12
    s_add_u32 s{st0}, s{st0}, {WS_Y}
    v_bfe_u32 v{vb}, v{vl}, 4, 1
    v_lshlrev_b32 v{vb}, 9, v{vb}
    v_lshl_add_u32 v{vb}, v{va}, 5, v{vb}
    v_lshrrev_b32 v{vc}, 5, v{vl}
    v_lshl_add_u32 v{vb}, v{vc}, 4, v{vb}
    """)
    for p in range(4):
        o = FRG + 4 * p
        for h in range(4): s.emit(f"v_cvt_pk_bf16_f32 v{o+h}, v{ACC+8*p+2*h}, v{ACC+8*p+2*h+1}")
    for p in range(4):
        o = FRG + 4 * p
        s.emit(f"v_permlane16_swap_b32 v{o}, v{o+2}"); s.emit(f"v_permlane16_swap_b32 v{o+1}, v{o+3}")
        s.emit(f"buffer_store_dwordx4 {vr(o,4)}, v{vb}, s[{sWS}:{sWS+3}], s{st0} offen offset:{1024*p} {sc}")
    s.emit("s_waitcnt vmcnt(0)")
    stamp()
    if stamps:
        s.emit("s_waitcnt lgkmcnt(0)")
        s.raw(f"""
        s_lshl_b32 s{st0}, s2, 8
        s_lshl_b32 s{st1}, s{sw}, 6
        s_add_u32 s{st0}, s{st0}, s{st1}
        s_add_u32 s{st0}, s{st0}, 0x20000
        v_mov_b32 v{va}, s{st0}
        """)
        for i in range(nst[0]):
            s.emit(f"v_mov_b32 v{vb}, s{sSt+2*i}")
            s.emit(f"buffer_store_dword v{vb}, v{va}, s[{sWS}:{sWS+3}], 0 offen offset:{4*i}")
    s.emit("K0_end:")
    s.emit("s_waitcnt vmcnt(0)")
    s.emit("K0_done:")
    print(f"k0: vgprs={V.n} sgprs={S.n} lds={LDS}", file=sys.stderr)
    return finish(s, "k0"), LDS

def gen_k3():
    s = Stream(); V = Alloc("v", 1, 128); S = Alloc("s", 3, 100)
    sWS = S("WS", 4, 4); sO = S("OUT", 4, 4)
    sw = S("wave"); st0 = S("t0"); st1 = S("t1"); st2 = S("t2"); sT = S("T"); sj = S("j"); sPb = S("pb", 8); sHi = S("hi"); su = S("u")
    vl = V("lane"); va = V("a"); vb = V("b"); vc = V("c"); vtok = V("tok")
    vP = V("p", 32, 4); vPC = V("pc", 8, 4); vA = V("af", 12, 4); vG = V("g", 3); vSel = V("sel", 12, 4); vD = V("d", 20, 4); vT = V("t", 8, 4)
    s.raw("""
    s_cmp_ge_u32 s2, 256
    s_cbranch_scc1 K3_done
    """)
    srd(s, sWS, "ws"); srd(s, sO, "out")
    s.raw(f"""
    v_lshrrev_b32 v{va}, 6, v0
    v_and_b32 v{vl}, 63, v0
    v_readfirstlane_b32 s{sw}, v{va}
    s_lshr_b32 s{st0}, s2, 5
    s_and_b32 s{st1}, s2, 4
    s_lshl_b32 s{st1}, s{st1}, 1
    s_add_u32 s{st0}, s{st0}, s{st1}          ; m2
    s_lshl_b32 s{st0}, s{st0}, 3
    s_and_b32 s{st1}, s2, 3
    s_lshl_b32 s{st1}, s{st1}, 1
    s_add_u32 s{sT}, s{st0}, s{st1}           ; T0 = 8*m2 + 2*kq
    s_bfe_u32 s{sj}, s2, 0x20003
    s_and_b32 s{su}, s{sw}, 1
    s_lshl_b32 s{st0}, s{sT}, 2
    s_add_u32 s{st0}, s{st0}, s{sj}
    s_mul_i32 s{st0}, s{st0}, 4608
    s_add_u32 s{st0}, s{st0}, {WS_P}
    s_mov_b32 s{sHi}, 0xffff0000
    """)
    for k in range(4):
        for u in range(2): s.emit(f"s_add_u32 s{sPb+2*k+u}, s{st0}, {k*128*18432 + u*18432}")
    s.raw(f"""
    v_lshlrev_b32 v{va}, 4, v0
    s_mul_i32 s{st1}, s{su}, 18432
    s_add_u32 s{st1}, s{st1}, 4096
    v_lshl_add_u32 v{vb}, v{vl}, 3, s{st1}
    v_and_b32 v{vtok}, 15, v{vl}
    s_waitcnt lgkmcnt(0)
    """)
    for k in range(4):
        for u in range(2):
            s.emit(f"buffer_load_dwordx4 {vr(vP+16*u+4*k,4)}, v{va}, s[{sWS}:{sWS+3}], s{sPb+2*k+u} offen")
        s.emit(f"buffer_load_dwordx2 {vr(vPC+2*k,2)}, v{vb}, s[{sWS}:{sWS+3}], s{sPb+2*k} offen")
    s.raw(f"""
    v_and_b32 v{vc}, 48, v{vl}
    v_lshl_add_u32 v{vc}, v{vtok}, 12, v{vc}
    s_lshl_b32 s{st0}, s{sT}, 5
    s_add_u32 s{st0}, s{st0}, {WS_Y}
    s_lshl_b32 s{st1}, s{sj}, 2
    s_add_u32 s{st1}, s{st1}, s{sw}
    s_lshl_b32 s{st1}, s{st1}, 17             ; (128j+32w)*4096
    s_add_u32 s{st1}, s{st1}, s{st0}
    buffer_load_dwordx4 {vr(vA,4)}, v{vc}, s[{sWS}:{sWS+3}], s{st1} offen
    s_add_u32 s{st1}, s{st1}, 65536
    buffer_load_dwordx4 {vr(vA+4,4)}, v{vc}, s[{sWS}:{sWS+3}], s{st1} offen
    s_add_u32 s{st1}, s{sj}, 32
    s_lshl_b32 s{st1}, s{st1}, 16
    s_add_u32 s{st1}, s{st1}, s{st0}
    buffer_load_dwordx4 {vr(vA+8,4)}, v{vc}, s[{sWS}:{sWS+3}], s{st1} offen
    v_lshlrev_b32 v{vc}, 2, v{vtok}
    s_lshl_b32 s{st0}, s{sT}, 6
    s_add_u32 s{st0}, s{st0}, {WS_G}
    buffer_load_dword v{vG}, v{vc}, s[{sWS}:{sWS+3}], s{st0} offen
    buffer_load_dword v{vG+1}, v{vc}, s[{sWS}:{sWS+3}], s{st0} offen offset:64
    s_lshl_b32 s{st1}, s{su}, 6
    s_add_u32 s{st0}, s{st0}, s{st1}
    buffer_load_dword v{vG+2}, v{vc}, s[{sWS}:{sWS+3}], s{st0} offen
    v_lshrrev_b32 v{va}, 4, v{vl}
    v_lshlrev_b32 v{va}, 3, v{va}
    v_sub_u32 v{va}, v{vtok}, v{va}            ; col - 8g
    v_and_b32 v{vb}, 1, v{vl}
    v_lshlrev_b32 v{vb}, 4, v{vb}
    v_mov_b32 v{vc}, 0x3f80
    v_lshlrev_b32 v{vb}, v{vb}, v{vc}
    v_ashrrev_i32 v{va}, 1, v{va}
    s_lshl_b32 s{st1}, s{su}, 3
    v_add_u32 v{vc}, s{st1}, v{va}
    """)
    for u in range(3):
        for i in range(4):
            s.emit(f"v_cmp_eq_i32 vcc, {i - 8*u if u < 2 else i}, v{va if u < 2 else vc}")
            s.emit(f"v_cndmask_b32 v{vSel+4*u+i}, 0, v{vb}, vcc")
    s.raw(f"""
    v_mul_u32_u24 v{va}, 1152, v{vtok}
    v_bfe_u32 v{vb}, v{vl}, 4, 1
    v_lshl_add_u32 v{vb}, v{vb}, 5, v{va}
    v_lshrrev_b32 v{vc}, 5, v{vl}
    v_lshl_add_u32 v{vb}, v{vc}, 4, v{vb}
    v_lshrrev_b32 v{vc}, 4, v{vl}
    v_lshl_add_u32 v{va}, v{vc}, 3, v{va}
    s_mul_i32 s{st0}, s{sT}, 18432
    s_lshl_b32 s{st1}, s{sj}, 2
    s_add_u32 s{st1}, s{st1}, s{sw}
    s_lshl_b32 s{st1}, s{st1}, 6
    s_add_u32 s{st1}, s{st1}, s{st0}
    s_add_u32 s{st2}, s{st1}, 18432
    s_mul_i32 s{sPb}, s{su}, 18432
    s_add_u32 s{st0}, s{st0}, s{sPb}
    s_lshl_b32 s{sPb}, s{sj}, 5
    s_add_u32 s{st0}, s{st0}, s{sPb}
    s_add_u32 s{st0}, s{st0}, 1024
    s_cmp_ge_u32 s{sw}, 2
    s_cselect_b32 s{st0}, 0x1000000, s{st0}
    s_waitcnt vmcnt(0)
    """)
    for u in range(2):
        for t in range(2):
            s.emit(f"v_mfma_f32_16x16x32_bf16 {vr(vD+8*u+4*t,4)}, {vr(vA+4*t,4)}, {vr(vSel+4*u,4)}, 0")
    s.emit(f"v_mfma_f32_16x16x32_bf16 {vr(vD+16,4)}, {vr(vA+8,4)}, {vr(vSel+8,4)}, 0")
    def combine(src, stride, nd, d, g, o):
        for i in range(nd):
            lo, hi = vT, vT + 1
            s.emit(f"v_lshlrev_b32 v{lo}, 16, v{src+i}"); s.emit(f"v_and_b32 v{hi}, s{sHi}, v{src+i}")
            for k in range(1, 4):
                s.emit(f"v_lshlrev_b32 v{vT+2}, 16, v{src+k*stride+i}"); s.emit(f"v_and_b32 v{vT+3}, s{sHi}, v{src+k*stride+i}")
                s.emit(f"v_add_f32 v{lo}, v{lo}, v{vT+2}"); s.emit(f"v_add_f32 v{hi}, v{hi}, v{vT+3}")
            s.emit(f"v_sub_f32 v{d+2*i}, v{d+2*i}, v{lo}"); s.emit(f"v_sub_f32 v{d+2*i+1}, v{d+2*i+1}, v{hi}")
            s.emit(f"v_fmac_f32 v{lo}, v{g}, v{d+2*i}"); s.emit(f"v_fmac_f32 v{hi}, v{g}, v{d+2*i+1}")
            s.emit(f"v_cvt_pk_bf16_f32 v{o+i}, v{lo}, v{hi}")
    for u in range(2):
        o = vSel + 4 * u
        combine(vP + 16 * u, 4, 4, vD + 8 * u, vG + u, o)
        s.emit(f"v_permlane16_swap_b32 v{o}, v{o+2}"); s.emit(f"v_permlane16_swap_b32 v{o+1}, v{o+3}")
        s.emit(f"buffer_store_dwordx4 {vr(o,4)}, v{vb}, s[{sO}:{sO+3}], s{st1 if u == 0 else st2} offen")
    combine(vPC, 2, 2, vD + 16, vG + 2, vSel + 8)
    s.emit(f"buffer_store_dwordx2 {vr(vSel+8,2)}, v{va}, s[{sO}:{sO+3}], s{st0} offen")
    s.emit("s_waitcnt vmcnt(0)")
    s.emit("K3_done:")
    print(f"k3: vgprs={V.n} sgprs={S.n}", file=sys.stderr)
    return finish(s, "k3"), 0
```

```python
from common import *

SLOT = 24576
def breg(b, BX):
    return vr(4 * b, 4, "a") if b < 64 else vr(BX + 4 * (b - 64), 4)

def gen_k1(nslot=4, stamps=False, sc="sc1"):
    s = Stream(); V = Alloc("v", 1, 256); S = Alloc("s", 3, 100)
    sX = S("X", 4, 4); sWG = S("WG", 4, 4); sWU = S("WU", 4, 4); sWS = S("WS", 4, 4)
    sw = S("wave"); st0 = S("t0"); st1 = S("t1"); st2 = S("t2")
    sCol = S("col"); sColC = S("colC"); sSo = S("so"); sM0 = S("m0base"); sM0C = S("m0baseC")
    sXt = S("xt", 4); sHt = S("ht", 4); sNL = S("nlog2e")
    sSt = S("stamps", 32, 2) if stamps else None
    BX = V("bx", 32, 4); ACC = V("acc", 128, 4); FR = V("frag", 24, 4)
    vRA = V("ra", 4); vRC = V("rc"); vD = V("dma", 6); vDC = V("dmaC"); vXA = V("xa"); vHA = V("ha"); vHC = V("hc")
    NT = 6; vT = V("tmp", NT); vl = V("lane"); va = V("a"); vb = V("b")
    nst = [0]
    def stamp():
        if stamps:
            s.emit(f"s_memrealtime s[{sSt + 2 * nst[0]}:{sSt + 2 * nst[0] + 1}]"); nst[0] += 1
    stamp()
    s.raw(f"""
    s_cmp_ge_u32 s2, 256
    s_cbranch_scc1 K1_done
    """)
    srd(s, sX, "u"); srd(s, sWG, "wg"); srd(s, sWU, "wu"); srd(s, sWS, "ws")
    s.raw(f"""
    v_lshrrev_b32 v{va}, 6, v0
    v_and_b32 v{vl}, 63, v0
    v_readfirstlane_b32 s{sw}, v{va}
    s_lshr_b32 s{st0}, s2, 6
    s_and_b32 s{st1}, s2, 4
    s_add_u32 s{st0}, s{st0}, s{st1}          ; mt
    s_and_b32 s{st1}, s2, 3
    s_lshl_b32 s{st1}, s{st1}, 1
    s_bfe_u32 s{st2}, s2, 0x10005
    s_add_u32 s{st1}, s{st1}, s{st2}          ; fb
    s_bfe_u32 s{st2}, s2, 0x20003             ; j
    s_mul_i32 s{sCol}, s{st1}, 1152
    s_lshl_b32 s{sColC}, s{st2}, 5
    s_add_u32 s{sColC}, s{sColC}, s{sCol}
    s_add_u32 s{sColC}, s{sColC}, 1024
    s_lshl_b32 s{sSo}, s{st2}, 8
    s_add_u32 s{sCol}, s{sCol}, s{sSo}
    s_mul_i32 s{sM0}, s{sw}, 6144
    s_mul_i32 s{sM0C}, s{sw}, 5120
    s_lshl_b32 s{st0}, s{st0}, 4
    s_lshl_b32 s{sSo}, s{sw}, 2
    s_add_u32 s{st0}, s{st0}, s{sSo}
    s_mul_i32 s{sXt}, s{st0}, 18432
    s_add_u32 s{sXt+1}, s{sXt}, 18432
    s_add_u32 s{sXt+2}, s{sXt}, 36864
    s_add_u32 s{sXt+3}, s{sXt}, 55296
    s_lshl_b32 s{st0}, s{st0}, 3
    s_add_u32 s{st0}, s{st0}, s{st1}
    s_mul_i32 s{sHt}, s{st0}, 18432
    s_add_u32 s{sHt}, s{sHt}, {WS_H}
    s_add_u32 s{sHt+1}, s{sHt}, 147456
    s_add_u32 s{sHt+2}, s{sHt}, 294912
    s_add_u32 s{sHt+3}, s{sHt}, 442368
    s_mov_b32 s{sNL}, 0xbfb8aa3b
    v_lshrrev_b32 v{va}, 3, v{vl}
    s_mul_i32 s{sSo}, s{sw}, 48
    v_add_u32 v{va}, s{sSo}, v{va}
    v_mul_u32_u24 v{va}, 9216, v{va}
    v_bfe_u32 v{vb}, v{vl}, 4, 1
    v_lshlrev_b32 v{vb}, 1, v{vb}
    v_xor_b32 v{vb}, v{vb}, v{vl}
    v_and_b32 v{vb}, 7, v{vb}
    v_lshl_add_u32 v{vD}, v{vb}, 4, v{va}
    v_xor_b32 v{va}, 64, v{vD}
    v_add_u32 v{vD+1}, {8*9216-1024}, v{va}
    v_add_u32 v{vD+2}, {16*9216-2048}, v{vD}
    v_add_u32 v{vD+3}, {24*9216-3072}, v{va}
    v_add_u32 v{vD+4}, {32*9216}, v{vD}
    v_add_u32 v{vD+5}, {40*9216-1024}, v{va}
    ; x voffset = (l&15)*1152 + (l>>4)*16
    v_and_b32 v{va}, 15, v{vl}
    v_mul_u32_u24 v{va}, 1152, v{va}
    v_and_b32 v{vb}, 48, v{vl}
    v_add_u32 v{vXA}, v{va}, v{vb}
    s_waitcnt lgkmcnt(0)
    """)
    stages = []
    for (mat, ch) in (("g", 0), ("u", 0), ("g", 1), ("u", 1)):
        for k in range(3): stages.append((mat, ch, k))
    stages += [("g", 2, 0), ("u", 2, 0)]
    NS = len(stages)
    def dma_ops(si, earliest):
        mat, ch, k = stages[si]; sr = sWG if mat == "g" else sWU
        base = (si % nslot) * SLOT
        ops = []
        if ch < 2:
            ops.append(Op(f"s_add_u32 s{sSo}, s{sCol}, {ch*128 + k*192*9216}", earliest))
            n = 6; m0 = sM0; so = sSo
        else:
            n = 5; m0 = sM0C; so = sColC
            if mat == "g":
                ops.append(Op(f"v_mov_b32 v{vD}, v{vDC}", earliest))
                for i in range(1, 5):
                    ops.append(Op(f"v_add_u32 v{vD+i}, {i*32*9216 - 1024*(i%4)}, v{vDC}", earliest))
        for i in range(n):
            if i % 4 == 0: ops.append(Op(f"s_add_u32 m0, s{m0}, {base + i*1024}", earliest))
            ops.append(Op(f"buffer_load_dwordx4 v{vD+i}, s[{sr}:{sr+3}], s{so} offen offset:{1024*(i%4)} lds", earliest))
        return ops
    dmaI = {}
    xI = {}
    def xload(b):
        ks, tt = divmod(b, 4)
        return f"buffer_load_dwordx4 {breg(b, BX)}, v{vXA}, s[{sX}:{sX+3}], s{sXt+tt} offen offset:{ks*64}"
    def emit_now(ops):
        last = None
        for o in ops:
            if o.i.kind == "dma" and s.ins[-1].kind == "salu" and "m0" in s.ins[-1].wr: s.emit("s_nop 0")
            s.emit(o.i)
            if o.i.kind == "dma": last = o.i
        return last
    xorder = [(2 * kp + e) * 4 + tt for kp in range(9) for tt in range(4) for e in range(2)]
    dmaI[0] = emit_now(dma_ops(0, 0))
    for b in xorder[:24]: xI[b] = s.emit(xload(b))
    dmaI[1] = emit_now(dma_ops(1, 0))
    for b in xorder[24:48]: xI[b] = s.emit(xload(b))
    s.raw(f"""
    v_lshrrev_b32 v{va}, 4, v{vl}
    v_lshlrev_b32 v{va}, 10, v{va}
    v_bfe_u32 v{vb}, v{vl}, 2, 2
    v_lshl_add_u32 v{va}, v{vb}, 7, v{va}
    v_and_b32 v{vb}, 3, v{vl}
    v_lshl_add_u32 v{va}, v{vb}, 3, v{va}
    v_bfe_u32 v{vb}, v{vl}, 3, 2
    v_lshl_add_u32 v{vRA}, v{vb}, 5, v{va}
    v_xor_b32 v{vRA+1}, 32, v{vRA}
    v_xor_b32 v{vRA+2}, 64, v{vRA}
    v_xor_b32 v{vRA+3}, 0x60, v{vRA}
    v_and_b32 v{va}, 31, v{vl}
    v_lshlrev_b32 v{va}, 3, v{va}
    v_lshrrev_b32 v{vb}, 5, v{vl}
    v_lshl_add_u32 v{vRC}, v{vb}, 9, v{va}
    ; C dma: rowpos=l>>1, krow = swap bits 2,3; voff = (160w + krow)*9216 + (l&1)*16
    v_lshrrev_b32 v{va}, 1, v{vl}
    v_and_b32 v{va}, 0x13, v{va}
    v_bfe_u32 v{vb}, v{vl}, 3, 1
    v_lshl_add_u32 v{va}, v{vb}, 3, v{va}
    v_bfe_u32 v{vb}, v{vl}, 4, 1
    v_lshl_add_u32 v{va}, v{vb}, 2, v{va}
    s_mul_i32 s{st0}, s{sw}, 160
    v_add_u32 v{va}, s{st0}, v{va}
    v_mul_u32_u24 v{va}, 9216, v{va}
    v_and_b32 v{vb}, 1, v{vl}
    v_lshl_add_u32 v{vDC}, v{vb}, 4, v{va}
    ; h store voffsets
    s_lshl_b32 s{st0}, s{st2}, 12
    v_lshl_add_u32 v{vHA}, v{vl}, 4, s{st0}
    s_lshl_b32 s{st0}, s{st2}, 9
    s_add_u32 s{st0}, s{st0}, 16384
    v_lshl_add_u32 v{vHC}, v{vl}, 3, s{st0}
    """)
    G = Gapper(s)
    groups = []
    slots = {("g",0): [0,1,2,3], ("u",0): [4,5,6,7], ("g",1): [0,1,5,4], ("u",1): [2,3,6,7], ("g",2): [0], ("u",2): [1]}
    for si, (mat, ch, k) in enumerate(stages):
        if ch < 2:
            for kp in range(3):
                for t in range(4): groups.append(dict(st=si, t=t, ks0=6*k + 2*kp, ksl=2*kp, acc=slots[(mat,ch)][t], C=False))
        else:
            for kp in range(9): groups.append(dict(st=si, t=0, ks0=2*kp, ksl=2*kp, acc=slots[(mat,ch)][0], C=True))
    NG = len(groups)
    first_m = {}; last_m = {}
    for gi, g in enumerate(groups):
        key = stages[g["st"]][:2] + (g["t"],)
        first_m.setdefault(key, gi * 8); last_m[key] = gi * 8
    hi = [False]
    def read_text(gi, q):
        g = groups[gi]; e, sec = divmod(q, 2)
        slot = g["st"] % nslot
        dst = FR + 8 * (gi % 3) + 4 * e + 2 * sec
        off = (slot % 2) * SLOT
        if g["C"]: return f"ds_read_b64_tr_b16 {vr(dst,2)}, v{vRC} offset:{off + (g['ksl']+e)*1024 + sec*256}"
        return f"ds_read_b64_tr_b16 {vr(dst,2)}, v{vRA+g['t']} offset:{off + (g['ksl']+e)*4096 + sec*512}"
    mem = []
    def track(ops, si):
        last = [o for o in ops if o.i.kind == "dma"][-1]
        dmaI[si] = last.i
        return ops
    mem += track(dma_ops(2, 0), 2) if nslot > 2 else []
    for b in xorder[48:]:
        o = Op(xload(b), 0); xI[b] = o.i; mem.append(o)
    for si in range(3, nslot): mem += track(dma_ops(si, 0), si)
    lastg = {}
    for gi, g in enumerate(groups): lastg[g["st"]] = gi
    for si in range(nslot, NS):
        bar = (lastg[si - nslot] - 1) * 8
        mem += track(dma_ops(si, bar), si)
    epi = []; tc = [0]
    def A(slot, tt, r): return ACC + 16 * slot + 4 * tt + r
    def silu(ch, t, earliest=0):
        sl = slots[("g", ch)][t]; lm = last_m[("g", ch, t)]
        for tt in range(4):
            for r in range(4):
                g_ = A(sl, tt, r); T = vT + tc[0] % NT; tc[0] += 1
                af = [lm + 2 * tt + 1]
                epi.append(Op(f"v_mul_f32 v{T}, s{sNL}, v{g_}", earliest, after=af))
                epi.append(Op(f"v_exp_f32 v{T}, v{T}"))
                epi.append(Op(f"v_add_f32 v{T}, 1.0, v{T}"))
                epi.append(Op(f"v_rcp_f32 v{T}, v{T}"))
                epi.append(Op(f"v_mul_f32 v{g_}, v{g_}, v{T}"))
    def nextuse(slot, after_m):
        c = [first_m[k + (t,)] for k, sl in slots.items() for t, x in enumerate(sl) if x == slot and first_m[k + (t,)] > after_m]
        return min(c) if c else None
    def fin(ch, t):
        gs = slots[("g", ch)][t]; us = slots[("u", ch)][t]; lm = last_m[("u", ch, t)]
        ps = slots[("u", ch)][t & ~1]
        dg = nextuse(gs, lm); du = nextuse(us, lm); dp = nextuse(ps, lm)
        for tt in range(4):
            af = [lm + 2 * tt + 1]
            for r in range(4):
                epi.append(Op(f"v_mul_f32 v{A(gs,tt,r)}, v{A(gs,tt,r)}, v{A(us,tt,r)}", after=af, deadline=None if du is None else du + 2 * tt))
            for h in range(2):
                epi.append(Op(f"v_cvt_pk_bf16_f32 v{A(ps,tt,2*(t&1)+h)}, v{A(gs,tt,2*h)}, v{A(gs,tt,2*h+1)}", deadline=None if dg is None else dg + 2 * tt))
            if ch < 2 and t & 1:
                epi.append(Op(f"buffer_store_dwordx4 {vr(A(ps,tt,0),4)}, v{vHA}, s[{sWS}:{sWS+3}], s{sHt+tt} offen offset:{(2*ch + t//2)*1024} {sc}", deadline=None if dp is None else dp + 2 * tt))
            if ch == 2:
                epi.append(Op(f"buffer_store_dwordx2 {vr(A(ps,tt,0),2)}, v{vHC}, s[{sWS}:{sWS+3}], s{sHt+tt} offen {sc}"))
    for ch in range(2):
        silu(ch, 0); silu(ch, 1); silu(ch, 2)
        fin(ch, 0); fin(ch, 1); silu(ch, 3); fin(ch, 2); fin(ch, 3)
    silu(2, 0); fin(2, 0)
    adr = []
    cur = {("A", t): 0 for t in range(4)}; cur["C"] = 0
    lastread = {}
    for gi, g in enumerate(groups):
        key = "C" if g["C"] else ("A", g["t"]); reg = vRC if g["C"] else vRA + g["t"]
        want = (g["st"] % nslot) // 2
        if cur[key] != want:
            e = lastread.get(key, -1) + 1
            d = (want - cur[key]) * 2 * SLOT
            adr.append(Op(f"v_add_u32 v{reg}, {d & 0xffffffff:#x}, v{reg}", e, deadline=max(0, (gi - 2) * 8)))
            cur[key] = want
        lastread[key] = (gi - 2) * 8 + 7
    G.add_flow(mem); G.add_flow(adr); G.add_flow(epi)
    s.need(dmaI[0]); s.emit("s_barrier")
    stamp()
    rdI = {}
    for gi in (0, 1):
        for q in range(4): rdI[(gi, q)] = s.emit(read_text(gi, q))
    s.need(rdI[(0, 3)], *[xI[(e) * 4] for e in range(2)])
    for gi, g in enumerate(groups):
        nxt = gi + 2
        bunch = nxt < NG and lastg[groups[nxt]["st"]] == nxt
        gaps = [0, 1, 2, 3] if bunch else [0, 2, 4, 6]
        for m in range(8):
            tt, e = divmod(m, 2)
            if tt & 1: e = 1 - e
            ks = g["ks0"] + e
            acc = vr(A(g["acc"], tt, 0), 4)
            first = g["ks0"] == 0 and (m % 2 == 0)
            txt = f"v_mfma_f32_16x16x32_bf16 {acc}, {vr(FR + 8*(gi%3) + 4*e, 4)}, {breg(ks*4+tt, BX)}, {'0' if first else acc}"
            sc_ = []; nofill = False
            wl = []
            if m == 7 and gi + 1 < NG: wl.append(rdI[(gi + 1, 3)])
            n_gi, n_m = (gi, m + 1) if m < 7 else (gi + 1, 0)
            if n_gi < NG and groups[n_gi]["st"] < 3 and groups[n_gi]["t"] == 0 and n_m % 2 == 0:
                wl += [xI[(groups[n_gi]["ks0"] + e2) * 4 + n_m // 2] for e2 in range(2)]
            barrier = m == 7 and gi + 2 < NG and lastg[g["st"]] == gi + 2 and g["st"] + 1 < NS
            if barrier:
                wl += [rdI[(gi + 2, 3)], dmaI[g["st"] + 1]]
            if wl: sc_.append(lambda st, wl=wl: st.need(*wl))
            if barrier:
                sc_.append("s_barrier"); nofill = True
            rd = read_text(nxt, gaps.index(m)) if (nxt < NG and m in gaps) else None
            r = G.mfma(txt, sc_, rd, nofill)
            if r is not None: rdI[(nxt, gaps.index(m))] = r
            if barrier and stamps and g["st"] % 3 == 2: stamp()
    stamp()
    left = G.drain()
    print(f"k1: forced={G.over} drained={left} vgprs={V.n} sgprs={S.n}", file=sys.stderr)
    s.emit("s_waitcnt vmcnt(0)")
    stamp()
    if stamps:
        s.emit("s_waitcnt lgkmcnt(0)")
        s.raw(f"""
        s_lshl_b32 s{st0}, s2, 8
        s_lshl_b32 s{st1}, s{sw}, 6
        s_add_u32 s{st0}, s{st0}, s{st1}
        v_mov_b32 v{va}, s{st0}
        """)
        for i in range(nst[0]):
            s.emit(f"v_mov_b32 v{vb}, s{sSt+2*i}")
            s.emit(f"buffer_store_dword v{vb}, v{va}, s[{sWS}:{sWS+3}], 0 offen offset:{4*i}")
        s.emit("s_waitcnt vmcnt(0)")
    s.emit("K1_done:")
    return finish(s, "k1"), nslot * SLOT

if __name__ == "__main__":
    for nm, kw in (("k1", {}), ("k1s", dict(stamps=True))):
        body, lds = gen_k1(**kw)
        open(f"exp/{nm}.s", "w").write(single(body, 256, 256, lds, vgpr=512, sgpr=100, accum=256))
```

```python
from common import *
from gemm1 import breg, SLOT

def gen_k2(nslot=4, stamps=False, sc=""):
    C = 3
    s = Stream(); V = Alloc("v", 1, 256); S = Alloc("s", 3, 100)
    sWD = S("WD", 4, 4); sWS = S("WS", 4, 4)
    sw = S("wave"); st0 = S("t0"); st1 = S("t1"); st2 = S("t2"); skq = S("kq"); sj = S("j"); skh = S("kh")
    sCol = S("col"); sColC = S("colC"); sSo = S("so"); sM0 = S("m0base"); sM0C = S("m0baseC")
    sHt = S("ht", 4); sPt = S("pt", 2)
    sSt = S("stamps", 32, 2) if stamps else None
    BX = V("bx", 32, 4); ACC = V("acc", 144, 4); FR = V("frag", 36, 4)
    vRA = V("ra", 4); vRC = V("rc"); vD = V("dma", 6); vDC = V("dmaC", 5); vH = V("h", 5); vSW = V("sw"); vSR = V("sr"); vPC = V("pc")
    vl = V("lane"); va = V("a"); vb = V("b")
    SCR = nslot * SLOT
    nst = [0]
    def stamp():
        if stamps:
            s.emit(f"s_memrealtime s[{sSt + 2 * nst[0]}:{sSt + 2 * nst[0] + 1}]"); nst[0] += 1
    stamp()
    s.raw(f"""
    s_cmp_ge_u32 s2, 256
    s_cbranch_scc1 K2_done
    """)
    srd(s, sWD, "wd"); srd(s, sWS, "ws")
    s.raw(f"""
    v_lshrrev_b32 v{va}, 6, v0
    v_and_b32 v{vl}, 63, v0
    v_readfirstlane_b32 s{sw}, v{va}
    s_lshr_b32 s{st0}, s2, 5
    s_and_b32 s{st1}, s2, 4
    s_lshl_b32 s{st1}, s{st1}, 1
    s_add_u32 s{st0}, s{st0}, s{st1}          ; m2
    s_and_b32 s{skq}, s2, 3
    s_bfe_u32 s{sj}, s2, 0x20003
    s_lshr_b32 s{skh}, s{sw}, 1
    s_mul_i32 s{sCol}, s{skq}, {1152*1152}
    s_lshl_b32 s{sColC}, s{sj}, 5
    s_add_u32 s{sColC}, s{sColC}, s{sCol}
    s_add_u32 s{sColC}, s{sColC}, 1024
    s_lshl_b32 s{sSo}, s{sj}, 8
    s_add_u32 s{sCol}, s{sCol}, s{sSo}
    s_mul_i32 s{sM0}, s{sw}, 6144
    s_mul_i32 s{sM0C}, s{sw}, 5120
    s_lshl_b32 s{st0}, s{st0}, 3
    s_and_b32 s{st1}, s{sw}, 1
    s_lshl_b32 s{st1}, s{st1}, 2
    s_add_u32 s{st0}, s{st0}, s{st1}
    s_and_b32 s{st1}, s{sw}, 2
    s_add_u32 s{st2}, s{st0}, s{st1}
    s_xor_b32 s{st1}, s{st1}, 2
    s_add_u32 s{st0}, s{st0}, s{st1}
    s_lshl_b32 s{st1}, s{skq}, 1
    s_add_u32 s{st1}, s{st1}, s{skh}          ; fb
    s_mul_i32 s{st1}, s{st1}, 18432
    s_add_u32 s{st1}, s{st1}, {WS_H}
    s_mul_i32 s{sHt}, s{st2}, 147456
    s_add_u32 s{sHt}, s{sHt}, s{st1}
    s_add_u32 s{sHt+1}, s{sHt}, 147456
    s_mul_i32 s{sHt+2}, s{st0}, 147456
    s_add_u32 s{sHt+2}, s{sHt+2}, s{st1}
    s_add_u32 s{sHt+3}, s{sHt+2}, 147456
    s_lshl_b32 s{st0}, s{skq}, 7
    s_add_u32 s{st0}, s{st0}, s{st2}
    s_lshl_b32 s{st0}, s{st0}, 2
    s_add_u32 s{st0}, s{st0}, s{sj}
    s_mul_i32 s{sPt}, s{st0}, 4608
    s_add_u32 s{sPt}, s{sPt}, {WS_P}
    s_add_u32 s{sPt+1}, s{sPt}, 18432
    s_mul_i32 s{st0}, s{skh}, 480
    s_mul_i32 s{st1}, s{sw}, 48
    s_add_u32 s{st0}, s{st0}, s{st1}
    v_lshrrev_b32 v{va}, 3, v{vl}
    v_add_u32 v{va}, s{st0}, v{va}
    v_mul_u32_u24 v{va}, 1152, v{va}
    v_lshrrev_b32 v{vb}, 4, v{vl}
    v_lshlrev_b32 v{vb}, 1, v{vb}
    v_xor_b32 v{vb}, v{vb}, v{vl}
    v_and_b32 v{vb}, 7, v{vb}
    v_lshl_add_u32 v{vD}, v{vb}, 4, v{va}
    """)
    for i in range(1, 6): s.emit(f"v_add_u32 v{vD+i}, {i*8*1152 - 1024*(i%4)}, v{vD}")
    s.emit(f"v_lshlrev_b32 v{vH}, 4, v{vl}")
    for i in range(1, 4): s.emit(f"v_add_u32 v{vH+i}, {i*4096}, v{vH}")
    s.emit(f"v_lshlrev_b32 v{vPC}, 3, v{vl}")
    s.emit(f"v_add_u32 v{vH+4}, 16384, v{vPC}")
    s.emit("s_waitcnt lgkmcnt(0)")
    stages = [(ch, k) for ch in range(2) for k in range(6)] + [(2, 0), (2, 1)]
    NS = len(stages)
    def dma_ops(si, earliest):
        ch, k = stages[si]; base = (si % nslot) * SLOT
        ops = []
        if ch < 2:
            ops.append(Op(f"s_add_u32 s{sSo}, s{sCol}, {ch*128 + k*96*1152}", earliest)); n = 6; m0 = sM0; vd = vD
        else:
            ops.append(Op(f"s_add_u32 s{sSo}, s{sColC}, {k*288*1152}", earliest)); n = 5; m0 = sM0C; vd = vDC
        for i in range(n):
            if i % 4 == 0: ops.append(Op(f"s_add_u32 m0, s{m0}, {base + i*1024}", earliest))
            ops.append(Op(f"buffer_load_dwordx4 v{vd+i}, s[{sWD}:{sWD+3}], s{sSo} offen offset:{1024*(i%4)} lds", earliest))
        return ops
    dmaI = {}; xI = {}
    def hload(b):
        ks, tt = divmod(b, 4)
        if ks < 16:
            return [f"buffer_load_dwordx4 {breg(b, BX)}, v{vH + ks//4}, s[{sWS}:{sWS+3}], s{sHt+tt} offen offset:{(ks%4)*1024}"]
        r = BX + 4 * (b - 64)
        return [f"buffer_load_dwordx2 {vr(r+2*e,2)}, v{vH+4}, s[{sWS}:{sWS+3}], s{sHt+tt} offen offset:{(2*(ks-16)+e)*512}" for e in range(2)]
    def emit_now(ops):
        last = None
        for o in ops:
            if o.i.kind == "dma" and s.ins[-1].kind == "salu" and "m0" in s.ins[-1].wr: s.emit("s_nop 0")
            s.emit(o.i)
            if o.i.kind == "dma": last = o.i
        return last
    xorder = [(C * kp + e) * 4 + tt for kp in range(18 // C) for tt in range(4) for e in range(C)]
    for st in range(3):
        dmaI[st] = emit_now(dma_ops(st, 0))
        for b in xorder[12*st:12*st+12]:
            for t in hload(b): xI[b] = s.emit(t)
    s.raw(f"""
    v_lshrrev_b32 v{va}, 2, v{vl}
    v_lshlrev_b32 v{va}, 7, v{va}
    v_and_b32 v{vb}, 3, v{vl}
    v_lshl_add_u32 v{va}, v{vb}, 3, v{va}
    v_bfe_u32 v{vb}, v{vl}, 3, 2
    v_lshl_add_u32 v{va}, v{vb}, 5, v{va}
    s_mul_i32 s{st0}, s{skh}, 12288
    v_add_u32 v{vRA}, s{st0}, v{va}
    v_xor_b32 v{vRA+1}, 32, v{vRA}
    v_xor_b32 v{vRA+2}, 64, v{vRA}
    v_xor_b32 v{vRA+3}, 0x60, v{vRA}
    s_mul_i32 s{st0}, s{skh}, 9216
    v_add_u32 v{vRC}, s{st0}, v{vPC}
    s_lshl_b32 s{st0}, s{sw}, 13
    s_add_u32 s{st0}, s{st0}, {SCR}
    v_add_u32 v{vSW}, s{st0}, v{vH}
    s_xor_b32 s{st0}, s{sw}, 2
    s_lshl_b32 s{st0}, s{st0}, 13
    s_add_u32 s{st0}, s{st0}, {SCR}
    v_add_u32 v{vSR}, s{st0}, v{vH}
    v_add_u32 v{vPC}, 4096, v{vPC}
    ; C dma: id = 5w+i; row = 32*id + (id>=9 ? 288:0) + (l>>1)
    v_lshrrev_b32 v{va}, 1, v{vl}
    v_mul_u32_u24 v{va}, 1152, v{va}
    v_and_b32 v{vb}, 1, v{vl}
    v_lshl_add_u32 v{va}, v{vb}, 4, v{va}
    """)
    for i in range(5):
        s.raw(f"""
        s_mul_i32 s{st0}, s{sw}, 5
        s_add_u32 s{st0}, s{st0}, {i}
        s_mul_i32 s{st1}, s{st0}, {32*1152}
        s_cmp_ge_u32 s{st0}, 9
        s_cselect_b32 s{st2}, {288*1152}, 0
        s_add_u32 s{st1}, s{st1}, s{st2}
        s_cmp_ge_u32 s{st0}, 18
        s_cselect_b32 s{st1}, 0x1000000, s{st1}
        s_sub_u32 s{st1}, s{st1}, {1024*(i%4)}
        v_add_u32 v{vDC+i}, s{st1}, v{va}
        """)
    G = Gapper(s)
    groups = []
    slots = {0: [0,1,2,3], 1: [4,5,6,7], 2: [8]}
    for si, (ch, k) in enumerate(stages):
        if ch < 2:
            for t in range(4): groups.append(dict(st=si, t=t, ks0=3*k, ksl=0, acc=slots[ch][t], C=False))
        else:
            for kp in range(3): groups.append(dict(st=si, t=0, ks0=9*k + 3*kp, ksl=3*kp, acc=slots[ch][0], C=True))
    NG = len(groups); GM = 4 * C
    last_m = {}
    for gi, g in enumerate(groups): last_m[(stages[g["st"]][0], g["t"])] = gi * GM
    def read_text(gi, q):
        g = groups[gi]; e, sec = divmod(q, 2)
        slot = g["st"] % nslot
        dst = FR + GM * (gi % 3) + 4 * e + 2 * sec
        off = (slot % 2) * SLOT
        if g["C"]: return f"ds_read_b64_tr_b16 {vr(dst,2)}, v{vRC} offset:{off + (g['ksl']+e)*1024 + sec*512}"
        return f"ds_read_b64_tr_b16 {vr(dst,2)}, v{vRA+g['t']} offset:{off + (g['ksl']+e)*4096 + sec*2048}"
    mem = []
    def track(ops, si):
        dmaI[si] = [o for o in ops if o.i.kind == "dma"][-1].i
        return ops
    lastg = {}
    for gi, g in enumerate(groups): lastg[g["st"]] = gi
    barm = {si: (lastg[si] - 1) * GM for si in range(NS)}
    for si in range(3, NS):
        mem += track(dma_ops(si, 0 if si < nslot else barm[si - nslot]), si)
        if si < 6:
            for b in xorder[12*si:12*si+12]:
                for t in hload(b):
                    o = Op(t, 0); xI[b] = o.i; mem.append(o)
    def A(slot, tt, r): return ACC + 16 * slot + 4 * tt + r
    epi = []
    def send(ch, deadline):
        for t in range(len(slots[ch])):
            for u in range(2):
                lm = last_m[(ch, t)] + C * (2 + u) + C - 1
                epi.append(Op(f"ds_write_b128 v{vSW}, {vr(A(slots[ch][t], 2+u, 0), 4)} offset:{(2*t+u)*1024}", after=[lm], deadline=deadline))
    def recv(ch, earliest, deadline):
        nt = len(slots[ch])
        for t in range(nt):
            for u in range(2):
                sl = slots[ch][t]
                rd = Op(f"ds_read_b128 {vr(A(sl, 2+u, 0), 4)}, v{vSR} offset:{(2*t+u)*1024}", earliest, deadline=deadline)
                epi.append(rd)
        rds = epi[-2*nt:]
        for t in range(nt):
            for u in range(2):
                sl = slots[ch][t]; ps = slots[ch][t & ~1]; rd = rds[2*t+u]
                for r in range(4):
                    epi.append(Op(f"v_add_f32 v{A(sl,2+u,r)}, v{A(sl,u,r)}, v{A(sl,2+u,r)}", earliest + (40 if G_live[0] else 0), needs=(lambda rd=rd: [rd.i]) if r == 0 else None))
                for h in range(2):
                    epi.append(Op(f"v_cvt_pk_bf16_f32 v{A(ps,u,2*(t&1)+h)}, v{A(sl,2+u,2*h)}, v{A(sl,2+u,2*h+1)}"))
                if ch < 2 and t & 1:
                    epi.append(Op(f"buffer_store_dwordx4 {vr(A(ps,u,0),4)}, v{vH}, s[{sWS}:{sWS+3}], s{sPt+u} offen offset:{(2*ch + t//2)*1024} {sc}"))
                if ch == 2:
                    epi.append(Op(f"buffer_store_dwordx2 {vr(A(ps,u,0),2)}, v{vPC}, s[{sWS}:{sWS+3}], s{sPt+u} offen {sc}"))
    G_live = [True]
    send(0, barm[6] - 3); recv(0, barm[6], barm[8] - 3)
    send(1, barm[12] - 3); recv(1, barm[12], None)
    adr = []
    cur = {("A", t): 0 for t in range(4)}; cur["C"] = 0
    lastread = {}
    for gi, g in enumerate(groups):
        key = "C" if g["C"] else ("A", g["t"]); reg = vRC if g["C"] else vRA + g["t"]
        want = (g["st"] % nslot) // 2
        if cur[key] != want:
            e = lastread.get(key, -1) + 1
            d = (want - cur[key]) * 2 * SLOT
            adr.append(Op(f"v_add_u32 v{reg}, {d & 0xffffffff:#x}, v{reg}", e, deadline=max(0, (gi - 2) * GM)))
            cur[key] = want
        lastread[key] = (gi - 2) * GM + GM - 1
    G.add_flow(mem); G.add_flow(adr); G.add_flow(epi)
    s.need(dmaI[0]); s.emit("s_barrier")
    stamp()
    rdI = {}
    NR = 2 * C
    for gi in (0, 1):
        for q in range(NR): rdI[(gi, q)] = s.emit(read_text(gi, q))
    s.need(rdI[(0, NR-1)], *[xI[e * 4] for e in range(C)])
    for gi, g in enumerate(groups):
        nxt = gi + 2
        bunch = nxt < NG and lastg[groups[nxt]["st"]] == nxt
        gaps = list(range(NR)) if bunch else list(range(0, GM, 2))
        for m in range(GM):
            tt, e = divmod(m, C)
            if tt & 1: e = C - 1 - e
            ks = g["ks0"] + e
            acc = vr(A(g["acc"], tt, 0), 4)
            first = g["ks0"] == 0 and (m % C == 0)
            txt = f"v_mfma_f32_16x16x32_bf16 {acc}, {vr(FR + GM*(gi%3) + 4*e, 4)}, {breg(ks*4+tt, BX)}, {'0' if first else acc}"
            sc_ = []; nofill = False; wl = []
            if m == GM - 1 and gi + 1 < NG: wl.append(rdI[(gi + 1, NR-1)])
            n_gi, n_m = (gi, m + 1) if m < GM - 1 else (gi + 1, 0)
            if n_gi < NG and groups[n_gi]["st"] < 6 and groups[n_gi]["t"] == 0 and n_m % C == 0:
                wl += [xI[(groups[n_gi]["ks0"] + e2) * 4 + n_m // C] for e2 in range(C)]
            barrier = m == GM - 1 and gi + 2 < NG and lastg[g["st"]] == gi + 2 and g["st"] + 1 < NS
            if barrier:
                def w(st, wl=wl, d=dmaI[g["st"] + 1]):
                    lastds = [i for i in st.ins[::-1][:200] if i.kind in ("dsr", "dsw")][0]
                    return st.need(*wl, d, lastds)
                sc_ += [w, "s_barrier"]; nofill = True
            elif wl: sc_.append(lambda st, wl=wl: st.need(*wl))
            rd = read_text(nxt, gaps.index(m)) if (nxt < NG and m in gaps) else None
            r = G.mfma(txt, sc_, rd, nofill)
            if r is not None: rdI[(nxt, gaps.index(m))] = r
            if barrier and stamps and g["st"] % 3 == 2: stamp()
    stamp()
    left = G.drain()
    s.emit("s_waitcnt lgkmcnt(0)"); s.emit("s_barrier")
    epi.clear(); G_live[0] = False
    send(2, None); G.add_flow(list(epi)); left += G.drain()
    s.emit("s_waitcnt lgkmcnt(0)"); s.emit("s_barrier")
    epi.clear(); recv(2, 0, None); G.add_flow(list(epi)); left += G.drain()
    print(f"k2: forced={G.over} drained={left} vgprs={V.n} sgprs={S.n}", file=sys.stderr)
    s.emit("s_waitcnt vmcnt(0)")
    stamp()
    if stamps:
        s.emit("s_waitcnt lgkmcnt(0)")
        s.raw(f"""
        s_lshl_b32 s{st0}, s2, 8
        s_lshl_b32 s{st1}, s{sw}, 6
        s_add_u32 s{st0}, s{st0}, s{st1}
        s_add_u32 s{st0}, s{st0}, 0x10000
        v_mov_b32 v{va}, s{st0}
        """)
        for i in range(nst[0]):
            s.emit(f"v_mov_b32 v{vb}, s{sSt+2*i}")
            s.emit(f"buffer_store_dword v{vb}, v{va}, s[{sWS}:{sWS+3}], 0 offen offset:{4*i}")
        s.emit("s_waitcnt vmcnt(0)")
    s.emit("K2_done:")
    return finish(s, "k2"), nslot * SLOT + 32768

if __name__ == "__main__":
    body, lds = gen_k2()
    open(f"k2.s", "w").write(single(body, 256, 256, lds, vgpr=512, sgpr=100, accum=256))
```

```python
KN = "gated_mix__ssm_conv_s4d__swiglu_ffn__prompt"
class Asm:
    def __init__(self):
        self.lines = []
    def __call__(self, s=""):
        for l in s.split("\n"):
            self.lines.append(l)
    def text(self):
        return "\n".join(self.lines) + "\n"

def kernel_desc(name, vgpr, sgpr, accum):
    return f""".amdhsa_kernel {name}
  .amdhsa_next_free_vgpr {vgpr}
  .amdhsa_next_free_sgpr {sgpr}
  .amdhsa_accum_offset {accum}
  .amdhsa_group_segment_fixed_size 0
  .amdhsa_kernarg_size 120
  .amdhsa_user_sgpr_count 2
  .amdhsa_user_sgpr_kernarg_segment_ptr 1
  .amdhsa_system_sgpr_workgroup_id_x 1
  .amdhsa_float_denorm_mode_32 3
.end_amdhsa_kernel
"""

def single(body, grid, block, lds, vgpr=256, sgpr=102, accum=256):
    n = KN + "_kernel"
    return f"""; @launch grid=({grid},1,1) block=({block},1,1) lds={lds}
.amdgcn_target "amdgcn-amd-amdhsa--gfx950"
.text
.globl {n}
.p2align 8
.type {n},@function
{n}:
{body}
s_endpgm
.section .rodata,"a"
.p2align 6
{kernel_desc(n, vgpr, sgpr, accum)}"""

def multi(kernels):
    s = ""
    for k in kernels:
        s += f"; @launch kernel={k['name']} grid=({k['grid']},1,1) block=({k['block']},1,1) lds={k['lds']}\n"
    s += '.amdgcn_target "amdgcn-amd-amdhsa--gfx950"\n.text\n'
    seen = set()
    for k in kernels:
        if k['name'] in seen: continue
        seen.add(k['name'])
        s += f".globl {k['name']}\n.p2align 8\n.type {k['name']},@function\n{k['name']}:\n{k['body']}\ns_endpgm\n"
    s += '.section .rodata,"a"\n'
    seen = set()
    for k in kernels:
        if k['name'] in seen: continue
        seen.add(k['name'])
        s += ".p2align 6\n" + kernel_desc(k['name'], k.get('vgpr',256), k.get('sgpr',102), k.get('accum',256))
    return s
```

```python
import re
TRANS = ("v_exp_f32", "v_log_f32", "v_rcp_f32", "v_rsq_f32", "v_sqrt_f32", "v_sin_f32", "v_cos_f32")
def regs_of(tok):
    tok = tok.strip()
    tok = tok.replace("-", "").replace("abs(", "").replace(")", "").replace("|", "")
    m = re.fullmatch(r"([vas])\[(\d+):(\d+)\]", tok)
    if m: return {f"{m.group(1)}{i}" for i in range(int(m.group(2)), int(m.group(3)) + 1)}
    m = re.fullmatch(r"([vas])(\d+)", tok)
    if m: return {tok}
    if tok in ("vcc", "exec", "m0", "scc"): return {tok}
    return set()

class I:
    __slots__ = ("t", "op", "rd", "wr", "kind", "srcc", "seq", "tag")
    def __init__(self, t, tag=None):
        self.t = t; self.tag = tag
        s = t.split(";")[0].strip()
        p = s.split(None, 1)
        self.op = op = p[0] if p else ""
        ops = []
        if len(p) > 1:
            ops = [x.strip() for x in re.split(r",(?![^\[]*\])", p[1])]
            last = ops[-1].split()
            mods = last[1:]
            ops[-1] = last[0] if last else ""
        else: mods = []
        R = [regs_of(o) for o in ops]
        rd, wr = set(), set(); self.srcc = set(); kind = "other"
        U = lambda l: set().union(*l) if l else set()
        if op.endswith(":"): kind = "label"
        elif op.startswith("v_mfma"):
            kind = "mfma"; wr = R[0]; rd = U(R[1:]); self.srcc = R[3]
        elif op.startswith("buffer_load") or op.startswith("global_load"):
            if "lds" in mods or "_lds_" in op:
                kind = "dma"; rd = U(R) | {"m0"}
            else:
                kind = "vload"; wr = R[0]; rd = U(R[1:])
                if "d16" in op: rd |= R[0]
        elif op.startswith("buffer_store") or op.startswith("global_store"):
            kind = "vstore"; rd = U(R)
        elif op.startswith("buffer_atomic") or op.startswith("global_atomic"):
            kind = "vstore"; rd = U(R)
            if "sc0" in mods: wr = R[0]
        elif op in ("buffer_inv", "buffer_wbl2"): kind = "vstore"
        elif op.startswith("ds_read") or op.startswith("ds_bpermute") or op.startswith("ds_swizzle"):
            kind = "dsr"; wr = R[0]; rd = U(R[1:])
            if "d16" in op: rd |= R[0]
        elif op.startswith("ds_"):
            kind = "dsw"; rd = U(R)
        elif op.startswith("s_load") or op in ("s_memtime", "s_memrealtime"):
            kind = "smem"; wr = R[0]; rd = U(R[1:])
        elif op.startswith("v_"):
            kind = "trans" if op.replace("_e32", "").replace("_e64", "") in TRANS else "valu"
            if op.startswith("v_cmp"):
                wr = R[0]; rd = U(R[1:])
            elif op.startswith("v_permlane"):
                wr = U(R); rd = U(R)
            elif "_co_" in op:
                wr = R[0] | R[1]; rd = U(R[2:])
            else:
                wr = R[0]; rd = U(R[1:])
                if op.startswith("v_fmac") or op.startswith("v_dot2c") or "dpp" in op or op.startswith("v_writelane"): rd |= R[0]
        elif op in ("s_waitcnt", "s_barrier", "s_nop", "s_setprio", "s_sleep", "s_endpgm"): kind = "sctl"
        elif op.startswith("s_cbranch") or op == "s_branch": kind = "branch"
        elif op.startswith("s_"):
            kind = "salu"
            if op.startswith("s_cmp") or op.startswith("s_bitcmp"): rd = U(R)
            else: wr = R[0]; rd = U(R[1:])
        self.rd, self.wr, self.kind = rd, wr, kind
    def cost(self):
        return 2 if self.kind == "trans" else 1

class Stream:
    def __init__(self):
        self.ins = []
        self.vm = 0; self.vm_done = 0
        self.lg = 0; self.lg_done = 0
        self.smem_out = False
        self.pend = {}
    def _chk(self, i):
        for r in (i.rd | i.wr):
            if r in self.pend:
                k, n = self.pend[r]
                ok = (k == "vm" and n <= self.vm_done) or (k == "lg" and n <= self.lg_done) or (k == "sm" and not self.smem_out)
                same_queue = r not in i.rd and ((k == "vm" and i.kind == "vload") or (k == "lg" and i.kind == "dsr"))
                d16 = "d16" in i.op and r in i.wr
                assert ok or same_queue or d16, f"use of un-waited load result {r} in: {i.t}"
                if ok: del self.pend[r]
    def raw(self, text):
        last = None
        for l in text.split("\n"):
            l = l.strip()
            if not l or l.startswith(";"): continue
            last = self.emit(l)
        return last
    def emit(self, t):
        i = t if isinstance(t, I) else I(t)
        i.seq = None
        if i.kind in ("vload", "vstore", "dma"):
            if self.vm - self.vm_done >= 62: self.emit("s_waitcnt vmcnt(60)")
            self.vm += 1; i.seq = ("vm", self.vm)
        elif i.kind in ("dsr", "dsw"):
            self.lg += 1; i.seq = ("lg", self.lg)
        elif i.kind == "smem":
            self.smem_out = True; i.seq = ("sm", 0)
        elif i.op == "s_waitcnt":
            m = re.search(r"vmcnt\((\d+)\)", i.t)
            if m: self.vm_done = max(self.vm_done, self.vm - int(m.group(1)))
            m = re.search(r"lgkmcnt\((\d+)\)", i.t)
            if m:
                assert not (self.smem_out and int(m.group(1)) > 0), "counted lgkm wait with smem outstanding"
                self.lg_done = max(self.lg_done, self.lg - int(m.group(1)))
                if int(m.group(1)) == 0: self.smem_out = False
        self._chk(i)
        if i.kind in ("vload", "dsr", "smem") or (i.kind == "vstore" and i.wr):
            for r in i.wr: self.pend[r] = i.seq
        self.ins.append(i)
        return i
    def need(self, *items):
        v = l = None
        for it in items:
            if it is None: continue
            k, n = it.seq
            if k == "vm" and n > self.vm_done: v = max(v or 0, n)
            if k == "lg" and n > self.lg_done: l = max(l or 0, n)
            if k == "sm" and self.smem_out: l = self.lg
        parts = []
        if v is not None: parts.append(f"vmcnt({min(self.vm - v, 63)})")
        if l is not None:
            n = 0 if self.smem_out else min(self.lg - l, 15)
            parts.append(f"lgkmcnt({n})")
        if parts:
            self.emit("s_waitcnt " + " ".join(parts)); return True
        return False
    def text(self):
        return "\n".join(("" if i.kind == "label" else "    ") + i.t for i in self.ins) + "\n"

def check(ins, fix=False):
    out = []; probs = []
    def states(i):
        if i.kind == "label": return 0
        if i.op == "s_nop": return int(i.t.split()[1]) + 1
        return 1
    isv = lambda i: i.kind in ("valu", "trans")
    for cur in ins:
        need = 0
        d = 0
        for prev in reversed(out):
            if d >= 20: break
            req = 0
            vr = lambda s: {x for x in s if x[0] in "va" and x != "vcc"}
            sr = lambda s: {x for x in s if x[0] == "s" or x == "vcc"}
            if isv(prev) and cur.kind == "mfma" and vr(prev.wr) & cur.rd: req = max(req, 2)
            if prev.kind == "mfma":
                p8 = 12 if "32x32" in prev.op else 8
                if cur.kind == "mfma":
                    ab = cur.rd - cur.srcc if not (cur.srcc & (cur.rd - cur.srcc)) else cur.rd
                    t = cur.t.split(None, 1)[1]
                    o = [x.strip() for x in re.split(r",(?![^\[]*\])", t)]
                    ab = regs_of(o[1]) | regs_of(o[2])
                    if prev.wr & ab: req = max(req, p8)
                    if prev.wr & cur.srcc and prev.wr != cur.srcc: req = max(req, p8 - 2)
                    if prev.wr & cur.wr and not (prev.wr & cur.srcc): req = max(req, p8 - 2)
                elif cur.kind in ("valu", "trans", "vload", "vstore", "dma", "dsr", "dsw"):
                    if prev.wr & (cur.rd | cur.wr): req = max(req, p8)
                    if isv(cur) and prev.srcc & cur.wr: req = max(req, 7 if p8 == 12 else 3)
            if prev.kind == "trans" and cur.kind in ("valu", "mfma") and prev.wr & cur.rd: req = max(req, 1)
            if prev.kind == "vstore" and ("x4" in prev.op or "x3" in prev.op):
                data = regs_of(re.split(r",(?![^\[]*\])", prev.t.split(None, 1)[1])[0 if prev.op.startswith("buffer") else 1])
                if data & cur.wr: req = max(req, 2 if isv(cur) else 1)
            if prev.kind == "salu" and "m0" in prev.wr and cur.kind == "dma": req = max(req, 1)
            if isv(prev) and sr(prev.wr):
                if cur.kind in ("vload", "vstore", "dma") and sr(prev.wr) & cur.rd: req = max(req, 5)
                if isv(cur) and sr(prev.wr) & cur.rd: req = max(req, 4 if "lane" in cur.op else 2)
                if cur.kind == "salu" and sr(prev.wr) & cur.rd: req = max(req, 1)
            if isv(prev) and vr(prev.wr) & cur.rd:
                if cur.op.startswith("v_readfirstlane") or cur.op.startswith("v_readlane"): req = max(req, 1)
                if "dpp" in cur.op or cur.op.startswith("v_permlane"): req = max(req, 2)
                if isv(cur) and ("op_sel" in prev.t and "pk" not in prev.op or "sdwa" in prev.op): req = max(req, 1)
            if req > d: need = max(need, req - d); why = prev
            d += states(prev)
        if need:
            probs.append((cur.t, why.t, need))
            if fix: out.append(I(f"s_nop {need - 1}"))
        out.append(cur)
    return (out, probs) if fix else probs

class Op:
    def __init__(self, text, earliest=0, deadline=None, after=None, needs=None, scalar=None, cb=None):
        self.i = I(text); self.earliest = earliest; self.deadline = deadline
        self.after = after or []
        self.needs = needs
        self.scalar = scalar
        self.deps = []; self.done = False; self.pos = None; self.cb = cb

class Gapper:
    def __init__(self, s, window=24):
        self.s = s; self.flows = []; self.window = window
        self.mpos = {}
        self.n = 0; self.over = 0
    def add_flow(self, ops):
        for k, o in enumerate(ops):
            for p in ops[max(0, k - 200):k]:
                if (p.i.wr & (o.i.rd | o.i.wr)) or (p.i.rd & o.i.wr): o.deps.append(p)
                elif p.i.kind in ("vstore", "vload", "dma") and o.i.kind in ("vstore", "vload", "dma"): o.deps.append(p)
                elif p.i.kind in ("dsr", "dsw") and o.i.kind in ("dsr", "dsw"): o.deps.append(p)
        self.flows.append(list(ops))
    def pending(self):
        return sum(len(f) for f in self.flows)
    def _ready(self, o):
        if o.earliest > self.n: return False
        L = len(self.s.ins)
        for p in o.deps:
            if not p.done: return False
            if p.i.kind == "trans" and (p.i.wr & o.i.rd) and L - p.pos < 2: return False
            if p.i.kind == "vstore" and (p.i.rd & o.i.wr) and L - p.pos < 3: return False
            if "m0" in p.i.wr and o.i.kind == "dma" and L - p.pos < 2: return False
        for m in o.after:
            if m not in self.mpos or L - self.mpos[m] < 9: return False
        return True
    def _emit(self, f, o):
        if o.needs: self.s.need(*o.needs())
        o.pos = len(self.s.ins); self.s.emit(o.i); o.done = True; f.remove(o)
        if o.cb: o.cb(o.i)
    def _pick(self, kinds):
        for f in self.flows:
            for o in f[:self.window]:
                if o.i.kind in kinds and self._ready(o): return f, o
        return None
    def _force(self, f, o):
        for p in o.deps:
            if not p.done: self._force(f, p)
        self.over += 1
        self._emit(f, o)
    def mfma(self, text, scalars=(), rd=None, nofill=False):
        for f in self.flows:
            for o in list(f):
                if not o.done and o.deadline is not None and o.deadline <= self.n: self._force(f, o)
        self.mpos[self.n] = len(self.s.ins)
        self.s.emit(text)
        ns = 0
        for x in scalars:
            if callable(x): ns += 1 if x(self.s) else 0
            else: self.s.emit(x); ns += 1
        r = None
        def try_scalar():
            p = self._pick(("salu", "sctl"))
            if p: self._emit(*p); return True
            return False
        if ns == 0 and not nofill:
            if try_scalar(): ns += 1
        slots = 2 - max(0, ns - 1)
        if rd is not None:
            r = self.s.emit(rd); slots -= 1
            if slots > 0 and not nofill:
                p = self._pick(("valu",))
                if p and not (p[1].needs): self._emit(*p)
                else: try_scalar()
        elif not nofill and slots > 0:
            p = self._pick(("dma", "vload", "vstore", "dsw", "dsr", "trans")) if slots == 2 else None
            if p:
                self._emit(*p)
                if p[1].i.kind == "dsr":
                    q = self._pick(("valu",))
                    if q and not q[1].needs: self._emit(*q)
            else:
                for _ in range(slots):
                    p = self._pick(("valu",))
                    if p: self._emit(*p)
                    elif not try_scalar(): break
        self.n += 1
        return r
    def drain(self):
        cnt = 0
        while self.pending():
            p = None
            save = self.n; self.n = 10 ** 9
            p = self._pick(("valu", "trans", "dma", "vload", "vstore", "dsw", "dsr", "salu", "sctl"))
            self.n = save
            if p: self._emit(*p); cnt += 1
            else: self.s.emit("s_nop 0")
        return cnt
```

```python
from common import *
from gemm1 import gen_k1
from gemm2 import gen_k2
from conv import gen_k0, gen_k3
def build(path, stamps=False, order="1023"):
    b0, l0 = gen_k0(stamps=stamps); b1, l1 = gen_k1(stamps=stamps, sc=""); b2, l2 = gen_k2(stamps=stamps); b3, l3 = gen_k3()
    K = {"0": dict(name="conv_kernel", body=b0, grid=256, block=256, lds=l0, vgpr=256, sgpr=100, accum=256),
         "1": dict(name="gemm1_kernel", body=b1, grid=256, block=256, lds=l1, vgpr=512, sgpr=100, accum=256),
         "2": dict(name="gemm2_kernel", body=b2, grid=256, block=256, lds=l2, vgpr=512, sgpr=100, accum=256),
         "3": dict(name="final_kernel", body=b3, grid=256, block=256, lds=l3, vgpr=128, sgpr=100, accum=128)}
    open(path, "w").write(multi([K[c] for c in order]))
if __name__ == "__main__":
    build("m4.s"); build("m4s.s", True)
```

```python
from common import *
def gen_report(off, idx, nwg=256, mult=4, base_us=100, red="max", off0=0):
    s = Stream()
    s.raw(f"""
    s_cmp_ge_u32 s2, 1
    s_cbranch_scc1 KR_done
    """)
    srd(s, 4, "ws")
    s.raw(f"""
    v_lshlrev_b32 v1, 8, v0
    s_waitcnt lgkmcnt(0)
    """)
    n = nwg // 64
    for i in range(4):
        s.raw(f"""
        s_mov_b32 s8, {off0 + i*16384}
        buffer_load_dword v{2+i}, v1, s[4:7], s8 offen
        s_mov_b32 s8, {off + (i % n)*16384 + 4*idx}
        buffer_load_dword v{6+i}, v1, s[4:7], s8 offen
        """)
    s.raw(f"""
    s_waitcnt vmcnt(0)
    v_min_u32 v2, v2, v3
    v_min_u32 v4, v4, v5
    v_min_u32 v2, v2, v4
    v_{red}_u32 v6, v6, v7
    v_{red}_u32 v8, v8, v9
    v_{red}_u32 v6, v6, v8
    s_nop 1
    v_readlane_b32 s10, v2, 0
    v_readlane_b32 s11, v6, 0
    """)
    for l in range(1, 64):
        s.raw(f"""
        v_readlane_b32 s12, v2, {l}
        v_readlane_b32 s13, v6, {l}
        s_nop 0
        s_min_u32 s10, s10, s12
        s_{red}_u32 s11, s11, s13
        """)
    s.raw(f"""
    s_sub_u32 s11, s11, s10
    s_min_u32 s11, s11, 20000
    s_mul_i32 s11, s11, {mult}
    s_add_u32 s11, s11, {base_us*100}
    s_mov_b32 s16, 0
    KR_loop:
    s_memrealtime s[14:15]
    s_waitcnt lgkmcnt(0)
    s_sub_u32 s14, s14, s10
    s_add_u32 s16, s16, 1
    s_cmp_gt_u32 s16, 200000
    s_cbranch_scc1 KR_done
    s_cmp_lt_u32 s14, s11
    s_cbranch_scc1 KR_loop
    KR_done:
    """)
    return dict(name="report_kernel", body=finish(s, "kr"), grid=1, block=64, lds=0, vgpr=16, sgpr=32, accum=16)
```

```python
from common import *
from gemm1 import gen_k1
from gemm2 import gen_k2
from conv import gen_k0, gen_k3
from report import gen_report
b0, l0 = gen_k0(stamps=True); b1, l1 = gen_k1(stamps=True, sc=""); b2, l2 = gen_k2(stamps=True); b3, l3 = gen_k3()
K = {"0": dict(name="conv_kernel", body=b0, grid=256, block=256, lds=l0, vgpr=256, sgpr=100, accum=256),
     "1": dict(name="gemm1_kernel", body=b1, grid=256, block=256, lds=l1, vgpr=512, sgpr=100, accum=256),
     "2": dict(name="gemm2_kernel", body=b2, grid=256, block=256, lds=l2, vgpr=512, sgpr=100, accum=256),
     "3": dict(name="final_kernel", body=b3, grid=256, block=256, lds=l3, vgpr=128, sgpr=100, accum=128)}
for nm, kw in dict(f=dict(off=0, idx=0, mult=0), k1start=dict(off=0, idx=0), k1s1=dict(off=0, idx=1), k1end=dict(off=0, idx=7),
                   k0start=dict(off=0x20000, idx=0, nwg=192, red="min"), k2end=dict(off=0x10000, idx=7)).items():
    open(f"rp_{nm}.s", "w").write(multi([K[c] for c in "1023"] + [gen_report(**kw)]))
```

```python
from common import *
from gemm1 import gen_k1
from gemm2 import gen_k2
from conv import gen_k0, gen_k3
from report import gen_report
SZ["bx"] = 2359296
def probe(kind, name):
    s = Stream()
    s.raw("""
    s_memrealtime s[20:21]
    s_cmp_ge_u32 s2, 256
    s_cbranch_scc1 KP_done
    """)
    srd(s, 4, "ws"); srd(s, 8, name); srd(s, 12, "wu"); srd(s, 16, "wd")
    s.raw("s_waitcnt lgkmcnt(0)")
    if kind == "lat":
        s.raw("""
        v_mov_b32 v1, 0
        s_cmp_eq_u32 s2, 0
        s_cbranch_scc0 KP_skip
        """)
        for i in range(32):
            s.raw(f"""
            s_mov_b32 s24, {(0x3000000 if name == 'ws' else 0) + i * 36992}
            buffer_load_dword v2, v1, s[8:11], s24 offen
            s_waitcnt vmcnt(0)
            """)
        s.emit("KP_skip:")
    elif kind == "bw":
        s.raw("""
        v_lshlrev_b32 v1, 4, v0
        s_mul_i32 s24, s2, 20480
        """)
        for i in range(5):
            for b in (8, 12, 16):
                s.emit(f"buffer_load_dwordx4 v[{4+4*(3*i+b//4-2)}:{7+4*(3*i+b//4-2)}], v1, s[{b}:{b+3}], s24 offen")
            s.emit("s_add_u32 s24, s24, 4096")
        s.emit("s_waitcnt vmcnt(0)")
    elif kind == "code":
        for i in range(2048): s.emit("v_add3_u32 v1, v0, v0, v0")
    s.raw(f"""
    s_barrier
    s_memrealtime s[22:23]
    s_waitcnt lgkmcnt(0)
    s_lshl_b32 s3, s2, 8
    s_add_u32 s3, s3, 0x30000
    v_mov_b32 v1, s3
    v_mov_b32 v2, s20
    v_mov_b32 v3, s22
    buffer_store_dwordx2 v[2:3], v1, s[4:7], 0 offen
    s_waitcnt vmcnt(0)
    KP_done:
    """)
    return dict(name="probe_kernel", body=finish(s, "kp"), grid=256, block=256, lds=98304, vgpr=128, sgpr=40, accum=128)
b0, l0 = gen_k0(); b1, l1 = gen_k1(sc=""); b2, l2 = gen_k2(); b3, l3 = gen_k3()
K = {"0": dict(name="conv_kernel", body=b0, grid=256, block=256, lds=l0, vgpr=256, sgpr=100, accum=256),
     "1": dict(name="gemm1_kernel", body=b1, grid=256, block=256, lds=l1, vgpr=512, sgpr=100, accum=256),
     "2": dict(name="gemm2_kernel", body=b2, grid=256, block=256, lds=l2, vgpr=512, sgpr=100, accum=256),
     "3": dict(name="final_kernel", body=b3, grid=256, block=256, lds=l3, vgpr=128, sgpr=100, accum=128)}
for nm, (kind, name) in dict(latbx=("lat", "bx"), latwg=("lat", "wg"), latws=("lat", "ws"), bw=("bw", "wg"), code=("code", "wg")).items():
    open(f"pb_{nm}.s", "w").write(multi([probe(kind, name)] + [K[c] for c in "1023"] + [gen_report(0x30000, 1, off0=0x30000, base_us=150)]))
open(f"pb_f10.s", "w").write(multi([probe("none", "wg")] + [K[c] for c in "10233333"] + [gen_report(0x30000, 1, off0=0x30000, base_us=150, mult=0)]))
```

```python
import re
TRANS = ("v_exp_f32", "v_log_f32", "v_rcp_f32", "v_rsq_f32", "v_sqrt_f32", "v_sin_f32", "v_cos_f32")
def regs_of(tok):
    tok = tok.strip()
    tok = tok.replace("-", "").replace("abs(", "").replace(")", "").replace("|", "")
    m = re.fullmatch(r"([vas])\[(\d+):(\d+)\]", tok)
    if m: return {f"{m.group(1)}{i}" for i in range(int(m.group(2)), int(m.group(3)) + 1)}
    m = re.fullmatch(r"([vas])(\d+)", tok)
    if m: return {tok}
    if tok in ("vcc", "exec", "m0", "scc"): return {tok}
    return set()

class I:
    __slots__ = ("t", "op", "rd", "wr", "kind", "srcc", "seq", "tag")
    def __init__(self, t, tag=None):
        self.t = t; self.tag = tag
        s = t.split(";")[0].strip()
        p = s.split(None, 1)
        self.op = op = p[0] if p else ""
        ops = []
        if len(p) > 1:
            ops = [x.strip() for x in re.split(r",(?![^\[]*\])", p[1])]
            last = ops[-1].split()
            mods = last[1:]
            ops[-1] = last[0] if last else ""
        else: mods = []
        R = [regs_of(o) for o in ops]
        rd, wr = set(), set(); self.srcc = set(); kind = "other"
        U = lambda l: set().union(*l) if l else set()
        if op.endswith(":"): kind = "label"
        elif op.startswith("v_mfma"):
            kind = "mfma"; wr = R[0]; rd = U(R[1:]); self.srcc = R[3]
        elif op.startswith("buffer_load") or op.startswith("global_load"):
            if "lds" in mods or "_lds_" in op:
                kind = "dma"; rd = U(R) | {"m0"}
            else:
                kind = "vload"; wr = R[0]; rd = U(R[1:])
                if "d16" in op: rd |= R[0]
        elif op.startswith("buffer_store") or op.startswith("global_store"):
            kind = "vstore"; rd = U(R)
        elif op.startswith("buffer_atomic") or op.startswith("global_atomic"):
            kind = "vstore"; rd = U(R)
            if "sc0" in mods: wr = R[0]
        elif op in ("buffer_inv", "buffer_wbl2"): kind = "vstore"
        elif op.startswith("ds_read") or op.startswith("ds_bpermute") or op.startswith("ds_swizzle"):
            kind = "dsr"; wr = R[0]; rd = U(R[1:])
            if "d16" in op: rd |= R[0]
        elif op.startswith("ds_"):
            kind = "dsw"; rd = U(R)
        elif op.startswith("s_load") or op in ("s_memtime", "s_memrealtime"):
            kind = "smem"; wr = R[0]; rd = U(R[1:])
        elif op.startswith("v_"):
            kind = "trans" if op.replace("_e32", "").replace("_e64", "") in TRANS else "valu"
            if op.startswith("v_cmp"):
                wr = R[0]; rd = U(R[1:])
            elif op.startswith("v_permlane"):
                wr = U(R); rd = U(R)
            elif "_co_" in op:
                wr = R[0] | R[1]; rd = U(R[2:])
            else:
                wr = R[0]; rd = U(R[1:])
                if op.startswith("v_fmac") or op.startswith("v_dot2c") or "dpp" in op or op.startswith("v_writelane"): rd |= R[0]
        elif op in ("WAIT", "s_waitcnt", "s_barrier", "s_nop", "s_setprio", "s_sleep", "s_endpgm"): kind = "sctl"
        elif op.startswith("s_cbranch") or op == "s_branch":
            kind = "branch"
            if "vcc" in op: rd = {"vcc"}
        elif op.startswith("s_"):
            kind = "salu"
            if op.startswith("s_cmp") or op.startswith("s_bitcmp"): rd = U(R)
            else: wr = R[0]; rd = U(R[1:])
        self.rd, self.wr, self.kind = rd, wr, kind
    def cost(self):
        return 2 if self.kind == "trans" else 1

class Stream:
    def __init__(self):
        self.ins = []
        self.vm = 0; self.vm_done = 0
        self.lg = 0; self.lg_done = 0
        self.smem_out = False
        self.pend = {}
    def _chk(self, i):
        for r in (i.rd | i.wr):
            if r in self.pend:
                k, n = self.pend[r]
                ok = (k == "vm" and n <= self.vm_done) or (k == "lg" and n <= self.lg_done) or (k == "sm" and not self.smem_out)
                same_queue = r not in i.rd and ((k == "vm" and i.kind == "vload") or (k == "lg" and i.kind == "dsr"))
                d16 = "d16" in i.op and r in i.wr
                assert ok or same_queue or d16, f"use of un-waited load result {r} in: {i.t}"
                if ok: del self.pend[r]
    def raw(self, text):
        last = None
        for l in text.split("\n"):
            l = l.strip()
            if not l or l.startswith(";"): continue
            last = self.emit(l)
        return last
    def emit(self, t):
        i = t if isinstance(t, I) else I(t)
        i.seq = None
        if i.kind in ("vload", "vstore", "dma"):
            if self.vm - self.vm_done >= 62: self.emit("s_waitcnt vmcnt(60)")
            self.vm += 1; i.seq = ("vm", self.vm)
        elif i.kind in ("dsr", "dsw"):
            self.lg += 1; i.seq = ("lg", self.lg)
        elif i.kind == "smem":
            self.smem_out = True; i.seq = ("sm", 0)
        elif i.op == "s_waitcnt":
            m = re.search(r"vmcnt\((\d+)\)", i.t)
            if m: self.vm_done = max(self.vm_done, self.vm - int(m.group(1)))
            m = re.search(r"lgkmcnt\((\d+)\)", i.t)
            if m:
                assert not (self.smem_out and int(m.group(1)) > 0), "counted lgkm wait with smem outstanding"
                self.lg_done = max(self.lg_done, self.lg - int(m.group(1)))
                if int(m.group(1)) == 0:
                    self.smem_out = False
                    self.pend = {r: q for r, q in self.pend.items() if q[0] != "sm"}
        self._chk(i)
        if i.kind in ("vload", "dsr", "smem") or (i.kind == "vstore" and i.wr):
            for r in i.wr: self.pend[r] = i.seq
        self.ins.append(i)
        return i
    def need(self, *items):
        v = l = None
        for it in items:
            if it is None: continue
            k, n = it.seq
            if k == "vm" and n > self.vm_done: v = max(v or 0, n)
            if k == "lg" and n > self.lg_done: l = max(l or 0, n)
            if k == "sm" and self.smem_out: l = self.lg
        parts = []
        if v is not None: parts.append(f"vmcnt({min(self.vm - v, 63)})")
        if l is not None:
            n = 0 if self.smem_out else min(self.lg - l, 15)
            parts.append(f"lgkmcnt({n})")
        if parts:
            self.emit("s_waitcnt " + " ".join(parts)); return True
        return False
    def satisfied(self, *items):
        for it in items:
            k, n = it.seq
            if (k == "vm" and n > self.vm_done) or (k == "lg" and n > self.lg_done) or (k == "sm" and self.smem_out): return False
        return True
    def text(self):
        return "\n".join(("" if i.kind == "label" else "    ") + i.t for i in self.ins) + "\n"

def check(ins, fix=False):
    out = []; probs = []
    def states(i):
        if i.kind == "label": return 0
        if i.op == "s_nop": return int(i.t.split()[1]) + 1
        return 1
    isv = lambda i: i.kind in ("valu", "trans")
    for cur in ins:
        need = 0
        d = 0
        for prev in reversed(out):
            if d >= 20: break
            req = 0
            vr = lambda s: {x for x in s if x[0] in "va" and x != "vcc"}
            sr = lambda s: {x for x in s if x[0] == "s" or x == "vcc"}
            if isv(prev) and cur.kind == "mfma" and vr(prev.wr) & cur.rd: req = max(req, 2)
            if prev.kind == "mfma":
                p8 = 12 if "32x32" in prev.op else 8
                if cur.kind == "mfma":
                    ab = cur.rd - cur.srcc if not (cur.srcc & (cur.rd - cur.srcc)) else cur.rd
                    t = cur.t.split(None, 1)[1]
                    o = [x.strip() for x in re.split(r",(?![^\[]*\])", t)]
                    ab = regs_of(o[1]) | regs_of(o[2])
                    if prev.wr & ab: req = max(req, p8)
                    if prev.wr & cur.srcc and prev.wr != cur.srcc: req = max(req, p8 - 2)
                    if prev.wr & cur.wr and not (prev.wr & cur.srcc): req = max(req, p8 - 2)
                elif cur.kind in ("valu", "trans", "vload", "vstore", "dma", "dsr", "dsw"):
                    if prev.wr & (cur.rd | cur.wr): req = max(req, p8)
                    if isv(cur) and prev.srcc & cur.wr: req = max(req, 7 if p8 == 12 else 3)
            if prev.op.startswith("v_dot") and prev.wr & (cur.rd | cur.wr) and cur.op != prev.op: req = max(req, 3)
            if prev.kind == "trans" and cur.kind in ("valu", "mfma") and prev.wr & cur.rd: req = max(req, 1)
            if prev.kind == "vstore" and ("x4" in prev.op or "x3" in prev.op):
                data = regs_of(re.split(r",(?![^\[]*\])", prev.t.split(None, 1)[1])[0 if prev.op.startswith("buffer") else 1])
                if data & cur.wr: req = max(req, 2 if isv(cur) else 1)
            if prev.kind == "salu" and "m0" in prev.wr and cur.kind == "dma": req = max(req, 1)
            if isv(prev) and sr(prev.wr):
                if cur.kind in ("vload", "vstore", "dma") and sr(prev.wr) & cur.rd: req = max(req, 5)
                if isv(cur) and sr(prev.wr) & cur.rd: req = max(req, 4 if "lane" in cur.op else 2)
                if cur.kind == "salu" and sr(prev.wr) & cur.rd: req = max(req, 1)
            if isv(prev) and vr(prev.wr) & cur.rd:
                if cur.op.startswith("v_readfirstlane") or cur.op.startswith("v_readlane"): req = max(req, 1)
                if "dpp" in cur.op or cur.op.startswith("v_permlane"): req = max(req, 2)
                if isv(cur) and ("op_sel" in prev.t and "pk" not in prev.op or "sdwa" in prev.op): req = max(req, 1)
            if req > d: need = max(need, req - d); why = prev
            d += states(prev)
        if need:
            probs.append((cur.t, why.t, need))
            if fix: out.append(I(f"s_nop {need - 1}"))
        out.append(cur)
    return (out, probs) if fix else probs

class Op:
    def __init__(self, text, earliest=0, deadline=None, after=None, needs=None, scalar=None, cb=None, xdeps=None, hard=None):
        self.i = I(text); self.earliest = earliest; self.deadline = deadline
        self.after = after or []
        self.needs = needs
        self.scalar = scalar
        self.hard = earliest if hard is None else hard
        self.deps = list(xdeps or []); self.done = False; self.pos = None; self.cb = cb

class Gapper:
    def __init__(self, s, window=24):
        self.s = s; self.flows = []; self.window = window
        self.mpos = {}
        self.n = 0; self.over = 0
    def add_flow(self, ops):
        for k, o in enumerate(ops):
            for p in ops[max(0, k - 200):k]:
                if (p.i.wr & (o.i.rd | o.i.wr)) or (p.i.rd & o.i.wr): o.deps.append(p)
                elif p.i.kind in ("vstore", "vload", "dma") and o.i.kind in ("vstore", "vload", "dma"): o.deps.append(p)
                elif p.i.kind in ("dsr", "dsw") and o.i.kind in ("dsr", "dsw"): o.deps.append(p)
        self.flows.append(list(ops))
    def pending(self):
        return sum(len(f) for f in self.flows)
    def _ready(self, o):
        if o.earliest > self.n: return False
        L = len(self.s.ins)
        for p in o.deps:
            if not p.done: return False
            if p.i.kind == "trans" and (p.i.wr & o.i.rd) and L - p.pos < 2: return False
            if p.i.kind == "vstore" and (p.i.rd & o.i.wr) and L - p.pos < 3: return False
            if "m0" in p.i.wr and o.i.kind == "dma" and L - p.pos < 2: return False
            if "vcc" in p.i.wr and "vcc" in o.i.rd and L - p.pos < 3: return False
            if p.i.kind in ("valu", "trans") and ("dpp" in o.i.op or "permlane" in o.i.op) and (p.i.wr & o.i.rd) and L - p.pos < 3: return False
        for m in o.after:
            if m not in self.mpos or L - self.mpos[m] < 9: return False
        return True
    def _free(self, o):
        return not o.needs or self.s.satisfied(*o.needs())
    def _emit(self, f, o):
        w = False
        if o.needs: w = self.s.need(*o.needs())
        o.pos = len(self.s.ins)
        if o.i.op != "WAIT": self.s.emit(o.i)
        o.done = True; f.remove(o)
        if o.cb: o.cb(o.i)
        return w
    def _pick(self, kinds):
        for f in self.flows:
            for o in f[:self.window]:
                if o.i.kind in kinds and self._ready(o): return f, o
        return None
    def _force(self, f, o):
        for p in o.deps:
            if not p.done: self._force([g for g in self.flows if p in g][0], p)
        self.over += 1
        assert o.hard <= self.n, f"forced before hard earliest: {o.i.t}"
        for m in o.after: assert m in self.mpos, f"forced before producer mfma: {o.i.t}"
        self._emit(f, o)
    def mfma(self, text, scalars=(), rd=None, nofill=False):
        for f in self.flows:
            for o in list(f):
                if not o.done and o.deadline is not None and o.deadline <= self.n: self._force(f, o)
        self.mpos[self.n] = len(self.s.ins)
        self.s.emit(text)
        ns = 0
        for x in scalars:
            if callable(x): ns += 1 if x(self.s) else 0
            else: self.s.emit(x); ns += 1
        r = None
        def try_scalar():
            p = self._pick(("salu", "sctl", "branch"))
            if p: self._emit(*p); return True
            return False
        if ns == 0 and not nofill:
            pv = self._pick(("dma", "vload", "vstore", "dsw", "dsr", "trans")) if rd is None else None
            if not (pv and not self._free(pv[1])):
                if try_scalar(): ns += 1
        slots = 2 - max(0, ns - 1)
        if rd is not None:
            r = self.s.emit(rd); slots -= 1
            if slots > 0 and not nofill:
                p = self._pick(("valu",))
                if p and self._free(p[1]): self._emit(*p)
                else: try_scalar()
        elif not nofill and slots > 0:
            p = self._pick(("dma", "vload", "vstore", "dsw", "dsr", "trans")) if slots == 2 else None
            if p:
                w = self._emit(*p)
                if p[1].i.kind == "dsr" and not (w and ns):
                    q = self._pick(("valu",))
                    if q and self._free(q[1]): self._emit(*q)
            else:
                for _ in range(slots):
                    p = self._pick(("valu",))
                    if p: self._emit(*p)
                    elif not try_scalar(): break
        self.n += 1
        return r
    def drain(self):
        cnt = 0
        while self.pending():
            p = None
            save = self.n; self.n = 10 ** 9
            p = self._pick(("valu", "trans", "dma", "vload", "vstore", "dsw", "dsr", "salu", "sctl", "branch"))
            self.n = save
            if p: self._emit(*p); cnt += 1
            else: self.s.emit("s_nop 0")
        return cnt
```

```python
from common import *
import struct
def f2u(x): return "0x%08x" % struct.unpack("<I", struct.pack("<f", x))[0]
LOG2E = 1.4426950408889634
SLOT = 24576; NSLOT = 4
ROW = 544; TABSZ = 57 * ROW; KTSZ = 8320; URSZ = 4576; CTSZ = 3072
XS = 98304
TAB = 0; CT = 98304; KT = CT + 3 * CTSZ; UR = KT + 3 * KTSZ
SCR = 98304
LDS = 163840
WS_FH = 0x2D00000; WS_FY = 0x2D10000; WS_FP = 0x2D20000
OOB = 0x40000000
SPIN = 1 << 15

def gen(stamps=False, P=None):
    P = dict(dict(d1=14, d2=7, hstep=4, hexp=12), **(P or {}))
    s = Stream(); S = Alloc("s", 3, 102)
    slow = []
    sX = S("X", 4, 4); sWG = S("WG", 4, 4); sWU = S("WU", 4, 4); sWD = S("WD", 4, 4); sWS = S("WS", 4, 4); sDB = S("DBG", 4, 4)
    sPp = S("pptr", 12, 4)
    sGW = S("gw", 2, 2)
    sO = sWG
    sw = S("wave"); st0 = S("t0"); st1 = S("t1"); st2 = S("t2"); sj = S("j"); sc_ = S("c"); sCnt = S("cnt")
    sCol = S("col"); sColC = S("colC"); sSo = S("so"); sXo = S("xo"); sM0 = S("m0base"); sM0C = S("m0baseC"); sM0X = S("m0x")
    sXt = S("xt", 4, 2); sHt = S("ht", 4); sNL = S("nlog2e"); sHi = S("hi")
    sFH = S("fh"); sFY = S("fy"); sFP = S("fp")
    NSTMP = 14
    sSt = S("stamps", 2 * NSTMP, 2) if stamps else None
    vl, va, vb = 1, 2, 3
    BX = 4; W = 36; M = 216
    nst = [0]
    def stamp():
        if stamps:
            assert nst[0] < NSTMP
            s.emit(f"s_memrealtime s[{sSt + 2 * nst[0]}:{sSt + 2 * nst[0] + 1}]"); nst[0] += 1
    def breg(b): return vr(4 * b, 4, "a") if b < 64 else vr(BX + 4 * (b - 64), 4)
    def emit_now(ops):
        for o in ops:
            if o.needs: s.need(*o.needs())
            if o.i.kind == "dma" and s.ins[-1].kind == "salu" and "m0" in s.ins[-1].wr: s.emit("s_nop 0")
            s.emit(o.i); o.done = True; o.pos = len(s.ins) - 1
            if o.cb: o.cb(o.i)
    def check_ops(name, load, reg, val, e_load=0, e_chk=0, deadline=None):
        ld = Op(load, e_load)
        cmp_ = f"v_cmp_gt_u32 vcc, {val}, v{reg}"
        c = Op(cmp_, e_chk, needs=lambda: [ld.i], xdeps=[ld])
        b = Op(f"s_cbranch_vccnz SLOW_{name}", e_chk, deadline=deadline, xdeps=[c], cb=lambda i: s.emit(f"RET_{name}:"))
        slow.append(f"""
        SLOW_{name}:
        s_mov_b32 s{sCnt}, 0
        SLOWL_{name}:
        {load}
        s_add_u32 s{sCnt}, s{sCnt}, 1
        s_cmp_gt_u32 s{sCnt}, {SPIN}
        s_waitcnt vmcnt(0)
        {cmp_}
        s_cbranch_scc1 RET_{name}
        s_nop 1
        s_cbranch_vccnz SLOWL_{name}
        s_branch RET_{name}
        """)
        return [ld, c, b]

    def engine(G, groups, C, FR, A, read_text, bI, nb_stages, dmaI, NS, hook=None):
        GM = 4 * C; NR = 2 * C; NG = len(groups)
        lastg = {}
        for gi, g in enumerate(groups): lastg[g["st"]] = gi
        rdI = {}
        for gi in (0, 1):
            for q in range(NR): rdI[(gi, q)] = s.emit(read_text(gi, q))
        s.need(rdI[(0, NR - 1)], *[bI[(groups[0]["ks0"] + e) * 4] for e in range(C)])
        for gi, g in enumerate(groups):
            nxt = gi + 2
            bunch = nxt < NG and lastg[groups[nxt]["st"]] == nxt
            gaps = list(range(NR)) if bunch else list(range(0, GM, 2))
            for m in range(GM):
                tt, e = divmod(m, C)
                if tt & 1: e = C - 1 - e
                ks = g["ks0"] + e
                acc = vr(A(g["acc"], tt, 0), 4)
                first = g["ks0"] == 0 and (m % C == 0)
                txt = f"v_mfma_f32_16x16x32_bf16 {acc}, {vr(FR + GM*(gi%3) + 4*e, 4)}, {breg(ks*4+tt)}, {'0' if first else acc}"
                scal = []; nofill = False; wl = []
                if m == GM - 1 and gi + 1 < NG: wl.append(rdI[(gi + 1, NR - 1)])
                n_gi, n_m = (gi, m + 1) if m < GM - 1 else (gi + 1, 0)
                if n_gi < NG and groups[n_gi]["st"] in nb_stages and groups[n_gi]["t"] == 0 and n_m % C == 0:
                    wl += [bI[(groups[n_gi]["ks0"] + e2) * 4 + n_m // C] for e2 in range(C)]
                barrier = m == GM - 1 and gi + 2 < NG and lastg[g["st"]] == gi + 2 and g["st"] + 1 < NS
                if barrier:
                    def w(st, wl=wl, si=g["st"], r=(gi + 2, NR - 1)):
                        extra = [i for i in st.ins[-300:] if i.kind == "dsw"][-1:]
                        return st.need(*wl, dmaI[si + 1], rdI[r], *extra)
                    scal += [w, "s_barrier"]; nofill = True
                elif wl: scal.append(lambda st, wl=wl: st.need(*wl))
                rd = read_text(nxt, gaps.index(m)) if (nxt < NG and m in gaps) else None
                r = G.mfma(txt, scal, rd, nofill)
                if r is not None: rdI[(nxt, gaps.index(m))] = r
                if barrier and hook: hook(g["st"])
    def toggles(groups, GM, vRA, vRC):
        adr = []; cur = {("A", t): 0 for t in range(4)}; cur["C"] = 0; lastread = {}
        for gi, g in enumerate(groups):
            key = "C" if g["C"] else ("A", g["t"]); reg = vRC if g["C"] else vRA + g["t"]
            want = (g["st"] % NSLOT) // 2
            if cur[key] != want:
                d = (want - cur[key]) * 2 * SLOT
                adr.append(Op(f"v_add_u32 v{reg}, {d & 0xffffffff:#x}, v{reg}", lastread.get(key, -1) + 1, deadline=max(0, (gi - 2) * GM)))
                cur[key] = want
            lastread[key] = (gi - 2) * GM + GM - 1
        return adr

    V = Alloc("v", M, 256)
    vRA = V("ra", 4); vRC = V("rc"); vD = V("dma", 6); vDC = V("dmaC"); vXD = V("xd", 2); vXR = V("xr", 2); vHA = V("ha"); vHC = V("hc")
    NT = 6; vT = V("tmp", NT); vPar = V("par", 12); vDt = V("dt", 3); vDs = V("dsk")
    ACC = W; FR = W + 128; vU = W + 152; vUT = W + 168; vF = W + 176; vOne = W + 177; vZero = W + 178; vc = W + 179
    stamp()
    s.raw(f"""
    s_cmp_ge_u32 s2, 256
    s_cbranch_scc1 KF_done
    s_load_dwordx2 s[{sX}:{sX+1}], s[0:1], {KA['u']}
    s_load_dwordx2 s[{sWG}:{sWG+1}], s[0:1], {KA['wg']}
    s_load_dwordx2 s[{sWU}:{sWU+1}], s[0:1], {KA['wu']}
    s_load_dwordx2 s[{sWS}:{sWS+1}], s[0:1], {KA['ws']}
    s_load_dwordx2 s[{sGW}:{sGW+1}], s[0:1], {KA['gw']}
    s_load_dwordx2 s[{sWD}:{sWD+1}], s[0:1], {KA['wd']}
    s_load_dwordx2 s[{sDB}:{sDB+1}], s[0:1], {KA['dbg']}
    s_load_dwordx8 s[{sPp}:{sPp+7}], s[0:1], {KA['lar']}
    s_load_dwordx4 s[{sPp+8}:{sPp+11}], s[0:1], {KA['ldt']}
    s_getpc_b64 s[{sXt}:{sXt+1}]
    KF_pc:
    s_lshr_b32 s{st0}, s2, 3
    s_and_b32 s{st0}, s{st0}, 1
    s_lshl_b32 s{st0}, s{st0}, 15
    v_lshl_add_u32 v{va}, v0, 7, s{st0}
    v_min_u32 v{va}, KF_done-KF_pc, v{va}
    global_load_dword v{vF}, v{va}, s[{sXt}:{sXt+1}]
    v_lshrrev_b32 v{va}, 6, v0
    v_and_b32 v{vl}, 63, v0
    v_readfirstlane_b32 s{sw}, v{va}
    """)
    for b, n in ((sX, "u"), (sWG, "wg"), (sWU, "wu"), (sWD, "wd"), (sWS, "ws"), (sDB, "dbg")):
        s.emit(f"s_mov_b32 s{b+2}, {SZ[n]}"); s.emit(f"s_mov_b32 s{b+3}, 0x00020000")
    s.raw(f"""
    s_lshr_b32 s{st0}, s2, 6
    s_and_b32 s{st1}, s2, 4
    s_add_u32 s{st0}, s{st0}, s{st1}          ; mt
    s_and_b32 s{st1}, s2, 3
    s_lshl_b32 s{st1}, s{st1}, 1
    s_bfe_u32 s{st2}, s2, 0x10005
    s_add_u32 s{st1}, s{st1}, s{st2}          ; fb
    s_bfe_u32 s{sj}, s2, 0x20003              ; j
    s_mul_i32 s{sCol}, s{st1}, 1152
    s_lshl_b32 s{sColC}, s{sj}, 5
    s_add_u32 s{sColC}, s{sColC}, s{sCol}
    s_add_u32 s{sColC}, s{sColC}, 1024
    s_lshl_b32 s{sSo}, s{sj}, 8
    s_add_u32 s{sCol}, s{sCol}, s{sSo}
    s_mul_i32 s{sM0}, s{sw}, 6144
    s_mul_i32 s{sM0C}, s{sw}, 5120
    s_lshl_b32 s{sM0X}, s{sw}, 14
    s_add_u32 s{sM0X}, s{sM0X}, {XS}
    s_lshl_b32 s{sFH}, s{st0}, 3
    s_add_u32 s{sFH}, s{sFH}, s{st1}
    s_lshl_b32 s{sFH}, s{sFH}, 2
    s_add_u32 s{sFH}, s{sFH}, s{sw}
    s_lshl_b32 s{sFH}, s{sFH}, 5
    s_add_u32 s{sFH}, s{sFH}, s{sj}
    s_lshl_b32 s{sFH}, s{sFH}, 2
    s_add_u32 s{sFH}, s{sFH}, {WS_FH}
    s_lshl_b32 s{st0}, s{st0}, 4
    s_lshl_b32 s{sSo}, s{sw}, 2
    s_add_u32 s{st0}, s{st0}, s{sSo}
    s_mul_i32 s{sXt}, s{st0}, 18432
    s_add_u32 s{sXt+1}, s{sXt}, 18432
    s_add_u32 s{sXt+2}, s{sXt}, 36864
    s_add_u32 s{sXt+3}, s{sXt}, 55296
    s_lshl_b32 s{st0}, s{st0}, 3
    s_add_u32 s{st0}, s{st0}, s{st1}
    s_mul_i32 s{sHt}, s{st0}, 18432
    s_add_u32 s{sHt}, s{sHt}, {WS_H}
    s_add_u32 s{sHt+1}, s{sHt}, 147456
    s_add_u32 s{sHt+2}, s{sHt}, 294912
    s_add_u32 s{sHt+3}, s{sHt}, 442368
    v_lshrrev_b32 v{vc}, 3, v{vl}
    s_mul_i32 s{sSo}, s{sw}, 48
    v_add_u32 v{va}, s{sSo}, v{vc}
    v_mul_u32_u24 v{va}, 9216, v{va}
    v_bfe_u32 v{vb}, v{vl}, 4, 1
    v_lshlrev_b32 v{vb}, 1, v{vb}
    v_xor_b32 v{vb}, v{vb}, v{vl}
    v_and_b32 v{vb}, 7, v{vb}
    v_lshl_add_u32 v{vD}, v{vb}, 4, v{va}
    v_xor_b32 v{va}, 64, v{vD}
    v_add_u32 v{vD+1}, {8*9216-1024}, v{va}
    v_add_u32 v{vD+2}, {16*9216-2048}, v{vD}
    v_add_u32 v{vD+3}, {24*9216-3072}, v{va}
    v_add_u32 v{vD+4}, {32*9216}, v{vD}
    v_add_u32 v{vD+5}, {40*9216-1024}, v{va}
    v_mul_u32_u24 v{va}, 1152, v{vc}
    v_lshrrev_b32 v{vb}, 4, v{vl}
    v_xor_b32 v{vb}, v{vb}, v{vl}
    v_and_b32 v{vb}, 7, v{vb}
    v_lshl_add_u32 v{vXD}, v{vb}, 4, v{va}
    v_xor_b32 v{va}, 64, v{vXD}
    v_add_u32 v{vXD+1}, {8*1152-1024}, v{va}
    s_waitcnt lgkmcnt(0)
    """)
    stages = []
    for (mat, ch) in (("g", 0), ("u", 0), ("g", 1), ("u", 1)):
        for k in range(3): stages.append((mat, ch, k))
    stages += [("g", 2, 0), ("u", 2, 0)]
    NS = len(stages)
    dmaI = {}; xI = {}
    def dma1(si, earliest, step):
        mat, ch, k = stages[si]; sr = sWG if mat == "g" else sWU
        base = (si % NSLOT) * SLOT; ops = []
        if ch < 2:
            ops.append(Op(f"s_add_u32 s{sSo}, s{sCol}, {ch*128 + k*192*9216}", earliest)); n = 6; m0 = sM0; so = sSo
        else:
            n = 5; m0 = sM0C; so = sColC
            if mat == "g":
                ops.append(Op(f"v_mov_b32 v{vD}, v{vDC}", earliest))
                for i in range(1, 5): ops.append(Op(f"v_add_u32 v{vD+i}, {i*32*9216 - 1024*(i%4)}, v{vDC}", earliest))
        for i in range(n):
            if i % 4 == 0: ops.append(Op(f"s_add_u32 m0, s{m0}, {base + i*1024}", earliest))
            ops.append(Op(f"buffer_load_dwordx4 v{vD+i}, s[{sr}:{sr+3}], s{so} offen offset:{1024*(i%4)} lds", earliest + i * step, hard=earliest))
        dmaI[si] = ops[-1].i
        return ops
    NU = 8; xd = {}; xr = {}
    def xdma(n, earliest=0):
        kp, tt = divmod(n, 4)
        prev = xr.get(n - NU)
        ops = [Op(f"s_add_u32 s{sXo}, s{sXt+tt}, {kp*128}", earliest), Op(f"s_add_u32 m0, s{sM0X}, {(n % NU)*2048}", earliest)]
        for h in range(2):
            ops.append(Op(f"buffer_load_dwordx4 v{vXD+h}, s[{sX}:{sX+3}], s{sXo} offen offset:{1024*h} lds", earliest,
                          needs=(lambda p=prev: [p.i]) if prev and h == 0 else None, xdeps=[prev] if prev else None))
        xd[n] = ops[-1]
        return ops
    def xread(n, earliest=0, deadline=None):
        kp, tt = divmod(n, 4); ops = []
        for e in range(2):
            b = (2 * kp + e) * 4 + tt
            ops.append(Op(f"ds_read_b128 {breg(b)}, v{vXR+e} offset:{(n % NU)*2048}", earliest, deadline=deadline,
                          needs=(lambda d=xd[n]: [d.i]) if e == 0 else None, xdeps=[xd[n]]))
            xI[b] = ops[-1].i
        xr[n] = ops[-1]
        return ops
    emit_now(dma1(0, 0, 0))
    for n in range(NU): emit_now(xdma(n))
    vGx = ACC + 64; vGw = ACC + 76; vGt = ACC + 88
    s.raw(f"""
    v_and_b32 v{va}, 31, v{vl}
    v_mul_u32_u24 v{va}, 12, v{va}
    v_lshrrev_b32 v{vGt+2}, 5, v0
    v_mul_u32_u24 v{vb}, 1152, v{vGt+2}
    v_add_u32 v{vb}, v{vb}, v{va}
    s_mul_i32 s{st0}, s2, {8*1152}
    """)
    emit_now(dma1(1, 0, 0))
    for i in range(3):
        s.emit(f"buffer_load_dwordx3 {vr(vGx+4*i,3)}, v{vb}, s[{sX}:{sX+3}], s{st0} offen offset:{384*i}")
        gI = s.emit(f"global_load_dwordx3 {vr(vGw+4*i,3)}, v{va}, s[{sGW}:{sGW+1}] offset:{384*i}")
    s.raw(f"""
    s_mov_b32 s{sNL}, {f2u(-LOG2E)}
    s_mov_b32 s{sHi}, 0xffff0000
    v_mov_b32 v{vZero}, 0
    v_mov_b32 v{vOne}, 1
    s_and_b32 s{st0}, s2, 7
    s_mul_i32 s{st0}, s{st0}, 24
    s_lshr_b32 s{st1}, s2, 3
    s_min_u32 s{st2}, s{st1}, 23
    s_add_u32 s{sc_}, s{st0}, s{st2}
    s_mul_i32 s{sFY}, s{sc_}, 3
    s_add_u32 s{sFY}, s{sFY}, s{sw}
    s_lshl_b32 s{sFY}, s{sFY}, 2
    s_add_u32 s{sFY}, s{sFY}, {WS_FY}
    s_cmp_ge_u32 s{st1}, 24
    s_cselect_b32 s{sFY}, {OOB}, s{sFY}
    s_cmp_eq_u32 s{sw}, 3
    s_cselect_b32 s{sFY}, {OOB}, s{sFY}
    s_and_b32 s{st0}, s2, 4
    s_lshl_b32 s{st0}, s{st0}, 3
    s_add_u32 s{st0}, s{st0}, s{st1}
    s_lshl_b32 s{st0}, s{st0}, 2
    s_and_b32 s{st1}, s{sw}, 1
    s_lshl_b32 s{st1}, s{st1}, 1
    s_lshr_b32 s{st2}, s{sw}, 1
    s_add_u32 s{st1}, s{st1}, s{st2}
    s_add_u32 s{st0}, s{st0}, s{st1}
    s_lshl_b32 s{st0}, s{st0}, 5
    s_and_b32 s{st1}, s2, 3
    s_add_u32 s{st0}, s{st0}, s{st1}
    s_lshl_b32 s{st0}, s{st0}, 2
    s_add_u32 s{sFP}, s{st0}, {WS_FP}
    buffer_store_dword v{vZero}, v{vZero}, s[{sWS}:{sWS+3}], s{sFH} offen sc1
    buffer_store_dword v{vZero}, v{vZero}, s[{sWS}:{sWS+3}], s{sFY} offen sc1
    buffer_store_dword v{vZero}, v{vZero}, s[{sWS}:{sWS+3}], s{sFP} offen sc1
    v_lshrrev_b32 v{va}, 4, v{vl}
    v_lshlrev_b32 v{va}, 10, v{va}
    v_bfe_u32 v{vb}, v{vl}, 2, 2
    v_lshl_add_u32 v{va}, v{vb}, 7, v{va}
    v_and_b32 v{vb}, 3, v{vl}
    v_lshl_add_u32 v{va}, v{vb}, 3, v{va}
    v_bfe_u32 v{vb}, v{vl}, 3, 2
    v_lshl_add_u32 v{vRA}, v{vb}, 5, v{va}
    v_xor_b32 v{vRA+1}, 32, v{vRA}
    v_xor_b32 v{vRA+2}, 64, v{vRA}
    v_xor_b32 v{vRA+3}, 0x60, v{vRA}
    v_and_b32 v{va}, 15, v{vl}
    v_lshrrev_b32 v{vb}, 1, v{va}
    v_lshrrev_b32 v{vc}, 4, v{vl}
    v_xor_b32 v{vb}, v{vb}, v{vc}
    v_lshlrev_b32 v{vb}, 4, v{vb}
    v_lshl_add_u32 v{vb}, v{va}, 7, v{vb}
    v_add_u32 v{vXR}, s{sM0X}, v{vb}
    v_xor_b32 v{vXR+1}, 64, v{vXR}
    v_and_b32 v{va}, 31, v{vl}
    v_lshlrev_b32 v{va}, 3, v{va}
    v_lshrrev_b32 v{vb}, 5, v{vl}
    v_lshl_add_u32 v{vRC}, v{vb}, 9, v{va}
    ; C dma: rowpos=l>>1, krow = swap bits 2,3; voff = (160w + krow)*9216 + (l&1)*16
    v_lshrrev_b32 v{va}, 1, v{vl}
    v_and_b32 v{va}, 0x13, v{va}
    v_bfe_u32 v{vb}, v{vl}, 3, 1
    v_lshl_add_u32 v{va}, v{vb}, 3, v{va}
    v_bfe_u32 v{vb}, v{vl}, 4, 1
    v_lshl_add_u32 v{va}, v{vb}, 2, v{va}
    s_mul_i32 s{st0}, s{sw}, 160
    v_add_u32 v{va}, s{st0}, v{va}
    v_mul_u32_u24 v{va}, 9216, v{va}
    v_and_b32 v{vb}, 1, v{vl}
    v_lshl_add_u32 v{vDC}, v{vb}, 4, v{va}
    ; h store voffsets
    s_lshl_b32 s{st0}, s{sj}, 12
    v_lshl_add_u32 v{vHA}, v{vl}, 4, s{st0}
    s_lshl_b32 s{st0}, s{sj}, 9
    s_add_u32 s{st0}, s{st0}, 16384
    v_lshl_add_u32 v{vHC}, v{vl}, 3, s{st0}
    """)
    s.need(dmaI[0]); s.emit("s_barrier")
    stamp()
    for n in range(4): emit_now(xread(n))
    for n in range(3): emit_now(xdma(n + NU))
    G = Gapper(s)
    groups = []
    slots = {("g",0): [0,1,2,3], ("u",0): [4,5,6,7], ("g",1): [0,1,5,4], ("u",1): [2,3,6,7], ("g",2): [0], ("u",2): [1]}
    for si, (mat, ch, k) in enumerate(stages):
        if ch < 2:
            for kp in range(3):
                for t in range(4): groups.append(dict(st=si, t=t, ks0=6*k + 2*kp, ksl=2*kp, acc=slots[(mat,ch)][t], C=False))
        else:
            for kp in range(9): groups.append(dict(st=si, t=0, ks0=2*kp, ksl=2*kp, acc=slots[(mat,ch)][0], C=True))
    first_m = {}; last_m = {}; lastg = {}
    for gi, g in enumerate(groups):
        key = stages[g["st"]][:2] + (g["t"],)
        first_m.setdefault(key, gi * 8); last_m[key] = gi * 8; lastg[g["st"]] = gi
    barm = {si: (lastg[si] - 1) * 8 for si in range(NS)}
    def read1(gi, q):
        g = groups[gi]; e, sec = divmod(q, 2)
        dst = FR + 8 * (gi % 3) + 4 * e + 2 * sec; off = ((g["st"] % NSLOT) % 2) * SLOT
        if g["C"]: return f"ds_read_b64_tr_b16 {vr(dst,2)}, v{vRC} offset:{off + (g['ksl']+e)*1024 + sec*256}"
        return f"ds_read_b64_tr_b16 {vr(dst,2)}, v{vRA+g['t']} offset:{off + (g['ksl']+e)*4096 + sec*512}"
    mem = []
    for gi in range(32):
        n = gi + 4
        mem += xread(n, gi * 8, deadline=32 * (n // 4) + 2 * (n % 4) - 3)
        if n + NU - 1 < 36: mem += xdma(n + NU - 1, gi * 8)
        if gi == 8: mem += dma1(2, 0, 0)
        if gi == 20: mem += dma1(3, 0, 0)
        if gi == 26: mem += dma1(4, barm[0], 0)
    for si in range(5, NS): mem += dma1(si, barm[si - NSLOT], P["d1"])
    epi = []; tc = [0]
    def A(slot, tt, r): return ACC + 16 * slot + 4 * tt + r
    def silu(ch, t):
        sl = slots[("g", ch)][t]; lm = last_m[("g", ch, t)]
        for tt in range(4):
            for r in range(4):
                g_ = A(sl, tt, r); T = vT + tc[0] % NT; tc[0] += 1
                epi.append(Op(f"v_mul_f32 v{T}, s{sNL}, v{g_}", after=[lm + 2 * tt + 1]))
                epi.append(Op(f"v_exp_f32 v{T}, v{T}"))
                epi.append(Op(f"v_add_f32 v{T}, 1.0, v{T}"))
                epi.append(Op(f"v_rcp_f32 v{T}, v{T}"))
                epi.append(Op(f"v_mul_f32 v{g_}, v{g_}, v{T}"))
    def nextuse(slot, after_m):
        c = [first_m[k + (t,)] for k, sl in slots.items() for t, x in enumerate(sl) if x == slot and first_m[k + (t,)] > after_m]
        return min(c) if c else None
    def fin(ch, t):
        gs = slots[("g", ch)][t]; us = slots[("u", ch)][t]; lm = last_m[("u", ch, t)]
        ps = slots[("u", ch)][t & ~1]
        dg = nextuse(gs, lm); du = nextuse(us, lm); dp = nextuse(ps, lm)
        for tt in range(4):
            for r in range(4):
                epi.append(Op(f"v_mul_f32 v{A(gs,tt,r)}, v{A(gs,tt,r)}, v{A(us,tt,r)}", after=[lm + 2 * tt + 1], deadline=None if du is None else du + 2 * tt))
            for h in range(2):
                epi.append(Op(f"v_cvt_pk_bf16_f32 v{A(ps,tt,2*(t&1)+h)}, v{A(gs,tt,2*h)}, v{A(gs,tt,2*h+1)}", deadline=None if dg is None else dg + 2 * tt))
            if ch < 2 and t & 1:
                epi.append(Op(f"buffer_store_dwordx4 {vr(A(ps,tt,0),4)}, v{vHA}, s[{sWS}:{sWS+3}], s{sHt+tt} offen offset:{(2*ch + t//2)*1024} sc1", deadline=None if dp is None else dp + 2 * tt))
            if ch == 2:
                epi.append(Op(f"buffer_store_dwordx2 {vr(A(ps,tt,0),2)}, v{vHC}, s[{sWS}:{sWS+3}], s{sHt+tt} offen sc1"))
    for ch in range(2):
        silu(ch, 0); silu(ch, 1); silu(ch, 2)
        fin(ch, 0); fin(ch, 1); silu(ch, 3); fin(ch, 2); fin(ch, 3)
    silu(2, 0); fin(2, 0)
    side = []
    t = vGt
    for i in range(9):
        o = 4 * (i // 3) + i % 3
        side.append(Op(f"v_dot2_f32_bf16 v{t}, v{vGx+o}, v{vGw+o}, {'0' if i == 0 else 'v%d' % t}", 100 + 2*i, needs=(lambda: [gI]) if i == 0 else None))
    for k, r in enumerate((8, 4, 2, 1)):
        side.append(Op(f"v_add_f32_dpp v{t}, v{t}, v{t} row_ror:{r} row_mask:0xf bank_mask:0xf", 130))
    for x in f"""v_mov_b32 v{t+1}, v{t}
    v_permlane16_swap_b32 v{t+1}, v{t}
    v_add_f32 v{t}, v{t}, v{t+1}
    v_mul_f32 v{t}, s{sNL}, v{t}
    v_exp_f32 v{t}, v{t}
    v_add_f32 v{t}, 1.0, v{t}
    v_rcp_f32 v{t}, v{t}
    v_lshlrev_b32 v{t+2}, 2, v{t+2}
    s_lshl_b32 s{st0}, s2, 5
    s_add_u32 s{st0}, s{st0}, {WS_G}""".split("\n"): side.append(Op(x.strip(), 130))
    gst = Op(f"buffer_store_dword v{t}, v{t+2}, s[{sWS}:{sWS+3}], s{st0} offen sc1", 130, deadline=270); side.append(gst)
    side.append(Op("WAIT", barm[3] - 8, deadline=barm[3] - 1, needs=lambda: [gst.i], xdeps=[gst]))
    side.append(Op(f"v_lshlrev_b32 v{va}, 12, v0", barm[3]))
    side.append(Op(f"buffer_atomic_add v{vOne}, v{va}, s[{sDB}:{sDB+3}], 0 offen", barm[3]))
    e0 = barm[6] + 10
    for x in f"""v_mul_u32_u24 v{va}, {8*1152}, v0
    s_mul_i32 s{st1}, s{sc_}, 6
    s_and_b32 s{st0}, s{st1}, 0xfffc
    s_and_b32 s{st2}, s{sc_}, 1
    s_lshl_b32 s{st2}, s{st2}, 4
    v_add_u32 v{vb}, {4*1152}, v{va}""".split("\n"): side.append(Op(x.strip(), barm[4]))
    uI = []
    for i in range(8):
        o = Op(f"buffer_load_dwordx2 {vr(vU+2*i,2)}, v{va if i < 4 else vb}, s[{sX}:{sX+3}], s{st0} offen offset:{1152*(i%4)}", barm[4] + 7 + 24 * i)
        uI.append(o); side.append(o)
    e1 = barm[7]
    for i in range(8):
        side.append(Op(f"v_alignbit_b32 v{vU+2*i}, v{vU+2*i+1}, v{vU+2*i}, s{st2}", e1, needs=(lambda: [uI[-1].i]) if i == 0 else None, xdeps=[uI[-1]] if i == 0 else [side[-1]]))
        side.append(Op(f"v_lshrrev_b32 v{vU+2*i+1}, s{st2}, v{vU+2*i+1}", e1))
    for x in f"""v_lshlrev_b32 v{va}, 4, v0
    v_sub_u32 v{va}, {UR + 4080}, v{va}
    s_mov_b32 s{st0}, 0x05040100
    s_mov_b32 s{st2}, 0x07060302""".split("\n"): side.append(Op(x.strip(), e1))
    for ch in range(3):
        o = vUT + 4 * (ch % 2)
        for k in range(4):
            lo = vU + 2 * (7 - 2 * k) + (ch >> 1); hi = vU + 2 * (6 - 2 * k) + (ch >> 1)
            side.append(Op(f"v_perm_b32 v{o+k}, v{hi}, v{lo}, s{st2 if ch == 1 else st0}", e1))
        side.append(Op(f"ds_write_b128 v{va}, {vr(o,4)} offset:{ch*URSZ}", e1))
    e2 = barm[8] - 40
    for x in f"""s_mul_i32 s{st0}, s{sc_}, 768
    v_lshl_add_u32 v{va}, v{vl}, 2, s{st0}
    v_mov_b32 v{vb}, s{st1}
    s_min_u32 s{st2}, s{sw}, 2
    s_lshl_b32 s{st2}, s{st2}, 1
    v_add_u32 v{vc}, s{st2}, v{vb}""".split("\n"): side.append(Op(x.strip(), e2))
    k = 0
    for ch in range(3):
        side.append(Op(f"global_load_ushort v{vDt+ch}, v{vb}, s[{sPp+8}:{sPp+9}] offset:{2*ch}", e2 + 4 * k)); k += 1
        for q in range(4):
            side.append(Op(f"global_load_dword v{vPar+4*ch+q}, v{va}, s[{sPp+2*q}:{sPp+2*q+1}] offset:{256*ch}", e2 + 4 * k)); k += 1
    pI = Op(f"global_load_ushort v{vDs}, v{vc}, s[{sPp+10}:{sPp+11}]", e2 + 4 * k); side.append(pI)
    side += check_ops("guard", f"buffer_load_dword v{vF}, v{vZero}, s[{sDB}:{sDB+3}], 0 offen sc1", vF, "0x100", e2 + 4 * k, barm[10])
    G.add_flow(mem); G.add_flow(toggles(groups, 8, vRA, vRC)); G.add_flow(side); G.add_flow(epi)
    engine(G, groups, 2, FR, A, read1, xI, (0, 1, 2), dmaI, NS, hook=lambda st: stamp() if st % 3 == 2 else None)
    left = G.drain()
    print(f"gemm1: forced={G.over} drained={left}", file=sys.stderr)
    stamp()
    V = Alloc("v", M, 240)
    vRA = V("ra", 4); vRC = V("rc"); vD = V("dma", 6); vDC = V("dmaC", 5); vH = V("h", 5); vSW = V("sw"); vSR = V("sr"); vPC = V("pc")
    skq = sXt; skh = sXt + 1; sPt = sXt + 2
    sFC = sM0X
    s.raw(f"""
    s_barrier
    s_load_dwordx2 s[{sO}:{sO+1}], s[0:1], {KA['out']}
    s_mov_b32 s{sO+2}, {SZ['out']}
    s_lshr_b32 s{st0}, s2, 5
    s_and_b32 s{st1}, s2, 4
    s_lshl_b32 s{st1}, s{st1}, 1
    s_add_u32 s{st0}, s{st0}, s{st1}          ; m2
    s_and_b32 s{skq}, s2, 3
    s_lshr_b32 s{skh}, s{sw}, 1
    s_mul_i32 s{sCol}, s{skq}, {1152*1152}
    s_lshl_b32 s{sColC}, s{sj}, 5
    s_add_u32 s{sColC}, s{sColC}, s{sCol}
    s_add_u32 s{sColC}, s{sColC}, 1024
    s_lshl_b32 s{sSo}, s{sj}, 8
    s_add_u32 s{sCol}, s{sCol}, s{sSo}
    s_lshr_b32 s{st1}, s{st0}, 1
    s_lshl_b32 s{st1}, s{st1}, 2
    s_add_u32 s{st1}, s{st1}, s{skq}
    s_lshl_b32 s{st1}, s{st1}, 1
    s_add_u32 s{st1}, s{st1}, s{skh}
    s_lshl_b32 s{st1}, s{st1}, 1
    s_and_b32 s{st2}, s{st0}, 1
    s_add_u32 s{st1}, s{st1}, s{st2}
    s_lshl_b32 s{st1}, s{st1}, 1
    s_and_b32 s{st2}, s{sw}, 1
    s_add_u32 s{st1}, s{st1}, s{st2}
    s_lshl_b32 s{st1}, s{st1}, 7
    s_add_u32 s{sFC}, s{st1}, {WS_FH}
    s_lshl_b32 s{st0}, s{st0}, 3
    s_lshl_b32 s{st1}, s{st2}, 2
    s_add_u32 s{st0}, s{st0}, s{st1}
    s_and_b32 s{st1}, s{sw}, 2
    s_add_u32 s{st2}, s{st0}, s{st1}
    s_xor_b32 s{st1}, s{st1}, 2
    s_add_u32 s{st0}, s{st0}, s{st1}
    s_lshl_b32 s{st1}, s{skq}, 1
    s_add_u32 s{st1}, s{st1}, s{skh}          ; fb
    s_mul_i32 s{st1}, s{st1}, 18432
    s_add_u32 s{st1}, s{st1}, {WS_H}
    s_mul_i32 s{sHt}, s{st2}, 147456
    s_add_u32 s{sHt}, s{sHt}, s{st1}
    s_add_u32 s{sHt+1}, s{sHt}, 147456
    s_mul_i32 s{sHt+2}, s{st0}, 147456
    s_add_u32 s{sHt+2}, s{sHt+2}, s{st1}
    s_add_u32 s{sHt+3}, s{sHt+2}, 147456
    s_lshl_b32 s{st0}, s{skq}, 7
    s_add_u32 s{st0}, s{st0}, s{st2}
    s_lshl_b32 s{st0}, s{st0}, 2
    s_add_u32 s{st0}, s{st0}, s{sj}
    s_mul_i32 s{sPt}, s{st0}, 4608
    s_add_u32 s{sPt}, s{sPt}, {WS_P}
    s_add_u32 s{sPt+1}, s{sPt}, 18432
    s_mul_i32 s{st0}, s{skh}, 480
    s_mul_i32 s{st1}, s{sw}, 48
    s_add_u32 s{st0}, s{st0}, s{st1}
    v_lshrrev_b32 v{va}, 3, v{vl}
    v_add_u32 v{va}, s{st0}, v{va}
    v_mul_u32_u24 v{va}, 1152, v{va}
    v_lshrrev_b32 v{vb}, 4, v{vl}
    v_lshlrev_b32 v{vb}, 1, v{vb}
    v_xor_b32 v{vb}, v{vb}, v{vl}
    v_and_b32 v{vb}, 7, v{vb}
    v_lshl_add_u32 v{vD}, v{vb}, 4, v{va}
    """)
    for i in range(1, 6): s.emit(f"v_add_u32 v{vD+i}, {i*8*1152 - 1024*(i%4)}, v{vD}")
    s.emit(f"v_lshlrev_b32 v{vH}, 4, v{vl}")
    for i in range(1, 4): s.emit(f"v_add_u32 v{vH+i}, {i*4096}, v{vH}")
    s.raw(f"""
    v_lshlrev_b32 v{vPC}, 3, v{vl}
    v_add_u32 v{vH+4}, 16384, v{vPC}
    v_and_b32 v{vc}, 3, v{vl}
    v_lshlrev_b32 v{vc}, 2, v{vc}
    s_waitcnt lgkmcnt(0)
    s_cmp_ge_u32 s2, 192
    s_cbranch_scc1 KF_noconv_wg
    """)
    s.need(pI.i)
    hflag = f"buffer_store_dword v{vOne}, v{vZero}, s[{sWS}:{sWS+3}], s{sFH} offen sc1"
    hpoll = f"buffer_load_dword v{vF}, v{vc}, s[{sWS}:{sWS+3}], s{sFC} offen sc1"
    vZ = W + 68; vCc = W + 80; t = W
    for ch in range(3):
        lar, aim, cre, cim = (vPar + 4 * ch + k for k in range(4)); dt = vDt + ch
        z = vZ + 4 * ch; c = vCc + 4 * ch
        s.raw(f"""
        v_lshlrev_b32 v{dt}, 16, v{dt}
        v_lshlrev_b32 v{t}, 16, v{lar}
        v_and_b32 v{t+1}, s{sHi}, v{lar}
        v_mul_f32 v{dt}, s{sNL}, v{dt}
        v_mul_f32 v{t}, s{sNL}, v{t}
        v_mul_f32 v{t+1}, s{sNL}, v{t+1}
        v_exp_f32 v{dt}, -v{dt}
        v_exp_f32 v{t}, -v{t}
        v_exp_f32 v{t+1}, -v{t+1}
        v_lshlrev_b32 v{z+1}, 16, v{aim}
        v_cvt_pk_bf16_f32 v{dt}, v{dt}, v{dt}
        v_cvt_pk_bf16_f32 v{t}, v{t}, v{t+1}
        v_and_b32 v{z+3}, s{sHi}, v{aim}
        v_and_b32 v{dt}, s{sHi}, v{dt}
        v_lshlrev_b32 v{z}, 16, v{t}
        v_and_b32 v{z+2}, s{sHi}, v{t}
        v_lshlrev_b32 v{c}, 16, v{cre}
        v_lshlrev_b32 v{c+1}, 16, v{cim}
        v_and_b32 v{c+2}, s{sHi}, v{cre}
        v_and_b32 v{c+3}, s{sHi}, v{cim}
        """)
        for k in range(4): s.emit(f"v_mul_f32 v{z+k}, v{dt}, v{z+k}")
        s.emit(f"v_add_f32 v{dt}, v{dt}, v{dt}")
        for k in range(4): s.emit(f"v_mul_f32 v{z+k}, {'s%d' % sNL if k % 2 == 0 else '0.15915494'}, v{z+k}")
        for k in range(4): s.emit(f"v_mul_f32 v{c+k}, v{dt}, v{c+k}")
    s.raw(f"""
    v_lshlrev_b32 v{va}, 3, v{vl}
    v_add_u32 v{vb}, {TABSZ*2}, v{va}
    s_cmp_eq_u32 s{sw}, 1
    s_cbranch_scc1 KF_p1
    s_cmp_eq_u32 s{sw}, 2
    s_cbranch_scc1 KF_p2
    s_cmp_eq_u32 s{sw}, 3
    s_cbranch_scc1 KF_p3
    """)
    Pq = [W + 4 * i for i in range(12)]; OUT = W + 48; oc = [0]; TMP = W + 64
    def cexp(d, ch, p):
        z = vZ + 4 * ch
        for k in range(4): s.emit(f"v_mul_f32 v{TMP+k}, {f2u(float(p))}, v{z+k}")
        for m in (0, 2): s.emit(f"v_fract_f32 v{TMP+m+1}, v{TMP+m+1}")
        for m in (0, 2): s.emit(f"v_exp_f32 v{TMP+m}, v{TMP+m}")
        for m in (0, 2):
            s.emit(f"v_cos_f32 v{d+m}, v{TMP+m+1}"); s.emit(f"v_sin_f32 v{d+m+1}, v{TMP+m+1}")
        for m in (0, 2): s.emit(f"v_pk_mul_f32 {vr(d+m,2)}, {vr(d+m,2)}, {vr(TMP+m,2)} op_sel:[0,0] op_sel_hi:[1,0]")
    def cmul(d, x, w):
        assert d != x and d != w
        for m in (0, 2): s.emit(f"v_pk_mul_f32 {vr(d+m,2)}, {vr(x+m,2)}, {vr(w+m,2)} op_sel:[0,0] op_sel_hi:[1,0]")
        for m in (0, 2): s.emit(f"v_pk_fma_f32 {vr(d+m,2)}, {vr(x+m,2)}, {vr(w+m,2)}, {vr(d+m,2)} op_sel:[1,1,0] op_sel_hi:[0,1,1] neg_lo:[1,0,0]")
    def put(x, ch, row, neg=False):
        o = OUT + 2 * (oc[0] % 8); oc[0] += 1
        n = "-" if neg else ""
        for m in (0, 1): s.emit(f"v_cvt_pk_bf16_f32 v{o+m}, v{x+2*m}, {n}v{x+2*m+1}")
        a, off = (va, ch * TABSZ) if ch < 2 else (vb, 0)
        s.emit(f"ds_write_b64 v{a}, {vr(o,2)} offset:{TAB + off + row*ROW}")
    def chain(cur, w, ch, rows, tmp, neg=False):
        for k, r in enumerate(rows):
            d = tmp[k % 2]; cmul(d, cur, w); put(d, ch, r, neg); cur = d
        return cur
    def mid(ch):
        if ch == 1: s.emit("s_waitcnt vmcnt(0)"); s.emit(hflag)
    for ch in range(3):
        mid(ch); cexp(Pq[0], ch, 16); put(vCc + 4 * ch, ch, 0, True)
        chain(vCc + 4 * ch, Pq[0], ch, range(1, 16), Pq[1:3], True)
    s.emit("s_branch KF_join"); s.emit("KF_p1:")
    for k in range(4): s.emit(f"v_mov_b32 v{Pq[3]+k}, {'0' if k & 1 else '1.0'}")
    for ch in range(3):
        mid(ch); cexp(Pq[0], ch, 1); put(Pq[3], ch, 16); put(Pq[0], ch, 17)
        chain(Pq[0], Pq[0], ch, range(18, 32), Pq[1:3])
    s.emit("s_branch KF_join"); s.emit("KF_p2:")
    for ch in range(3):
        mid(ch); cexp(Pq[0], ch, 2); cexp(Pq[3], ch, 256); put(Pq[3], ch, 32)
        chain(Pq[3], Pq[0], ch, range(33, 40), Pq[1:3])
        cmul(Pq[4], Pq[0], Pq[0]); cmul(Pq[5], Pq[3], Pq[3]); put(Pq[5], ch, 40)
        chain(Pq[5], Pq[4], ch, range(41, 44), Pq[1:3])
    s.emit("s_branch KF_join"); s.emit("KF_p3:")
    for ch in range(3):
        mid(ch); cexp(Pq[0], ch, 4); cexp(Pq[3], ch, 256)
        cmul(Pq[4], Pq[0], Pq[0]); cmul(Pq[5], Pq[3], Pq[3]); cmul(Pq[6], Pq[5], Pq[3]); put(Pq[6], ch, 44)
        chain(Pq[6], Pq[0], ch, range(45, 48), Pq[1:3])
        cur = Pq[6]
        for o in range(5):
            d = Pq[7 + o % 2]; cmul(d, cur, Pq[3]); put(d, ch, 48 + 2 * o); cur = d
            if o < 4: cmul(Pq[1], cur, Pq[4]); put(Pq[1], ch, 49 + 2 * o)
    s.emit("KF_join:")
    s.raw(f"""
    s_waitcnt lgkmcnt(0)
    s_barrier
    s_cmp_eq_u32 s{sw}, 3
    s_cbranch_scc1 KF_noconv_wave
    """)
    stamp()
    V2 = Alloc("v", 240, 255)
    vKA = V2("ka", 4); vUA = V2("ua"); vKT = V2("kt"); a0 = V2("a0"); a1 = V2("a1"); a2 = V2("a2"); a3 = V2("a3"); vg16 = V2("g16")
    FRG = W + 32; CACC = W; Z = W + 160
    hchk = check_ops("h1", hpoll, vF, "1")
    emit_now(hchk[:1])
    s.raw(f"""
    v_and_b32 v{va}, 15, v{vl}
    v_mul_u32_u24 v{vb}, {ROW}, v{va}
    v_and_b32 v{vg16}, 48, v{vl}
    s_mul_i32 s{st0}, s{sw}, {TABSZ}
    v_add3_u32 v{vb}, v{vb}, v{vg16}, s{st0}
    """)
    rI = {}
    for ks in range(8):
        for tI in range(4):
            rI[(ks, tI)] = s.emit(f"ds_read_b128 {vr(FRG + 16*ks + 4*tI, 4)}, v{vb} offset:{TAB + tI*16*ROW + ks*64}")
        if ks == 2:
            for k in range(4): s.emit(f"v_mov_b32 v{Z+k}, 0")
            s.raw(f"""
            s_mul_i32 s{st0}, s{sw}, {URSZ}
            s_add_u32 s{st0}, s{st0}, {UR}
            v_min_u32 v{vUA}, 29, v{vl}
            v_lshl_add_u32 v{vUA}, v{vUA}, 4, s{st0}
            ds_write_b128 v{vUA}, {vr(Z,4)} offset:4096
            v_sub_u32 v{vUA}, 15, v{va}
            v_lshl_add_u32 v{vUA}, v{vUA}, 5, v{vg16}
            v_add_u32 v{vUA}, s{st0}, v{vUA}
            s_mul_i32 s{st0}, s{sw}, {KTSZ}
            s_add_u32 s{st0}, s{st0}, {KT}
            v_and_b32 v{vKT}, 1, v{vl}
            v_lshl_add_u32 v{vKA}, v{vKT}, 4, s{st0}
            ds_write_b128 v{vKA}, {vr(Z,4)} offset:0
            ds_write_b128 v{vKA}, {vr(Z,4)} offset:4160
            v_xor_b32 v{vKT}, 1, v{vKT}
            v_mul_u32_u24 v{vKT}, 4160, v{vKT}
            v_add_u32 v{vKA}, 1, v{va}
            v_lshrrev_b32 v{vKA}, 1, v{vKA}
            v_lshl_add_u32 v{vKA}, v{vKA}, 2, v{vg16}
            v_add3_u32 v{vKA}, v{vKA}, v{vKT}, s{st0}
            v_add_u32 v{vKA+1}, 1024, v{vKA}
            v_add_u32 v{vKA+2}, 2048, v{vKA}
            v_add_u32 v{vKA+3}, 3072, v{vKA}
            v_mov_b32 v{vKT}, s{st0}
            """)
    for ks in range(8):
        s.need(rI[(ks, 3)])
        if ks == 7: s.emit("s_barrier")
        for tI in range(3):
            acc = vr(CACC + 4 * tI, 4)
            s.emit(f"v_mfma_f32_16x16x32_bf16 {acc}, {vr(FRG + 16*ks + 4*(tI+1), 4)}, {vr(FRG + 16*ks, 4)}, {'0' if ks == 0 else acc}")
    C2 = 3
    stages2 = [(ch, k) for ch in range(2) for k in range(6)] + [(2, 0), (2, 1)]
    NS2 = len(stages2)
    dmaI2 = {}; hI = {}
    def dma2(si, earliest, step):
        ch, k = stages2[si]; base = (si % NSLOT) * SLOT; ops = []
        if ch < 2:
            ops.append(Op(f"s_add_u32 s{sSo}, s{sCol}, {ch*128 + k*96*1152}", earliest)); n = 6; m0 = sM0; vd = vD
        else:
            ops.append(Op(f"s_add_u32 s{sSo}, s{sColC}, {k*288*1152}", earliest)); n = 5; m0 = sM0C; vd = vDC
        for i in range(n):
            if i % 4 == 0: ops.append(Op(f"s_add_u32 m0, s{m0}, {base + i*1024}", earliest))
            ops.append(Op(f"buffer_load_dwordx4 v{vd+i}, s[{sWD}:{sWD+3}], s{sSo} offen offset:{1024*(i%4)} lds", earliest + i * step, hard=earliest))
        dmaI2[si] = ops[-1].i
        return ops
    def hload(b):
        ks, tt = divmod(b, 4)
        if ks < 16:
            L = [f"buffer_load_dwordx4 {breg(b)}, v{vH + ks//4}, s[{sWS}:{sWS+3}], s{sHt+tt} offen offset:{(ks%4)*1024} sc1"]
        else:
            r = BX + 4 * (b - 64)
            L = [f"buffer_load_dwordx2 {vr(r+2*e,2)}, v{vH+4}, s[{sWS}:{sWS+3}], s{sHt+tt} offen offset:{(2*(ks-16)+e)*512} sc1" for e in range(2)]
        ops = [Op(x) for x in L]; hI[b] = ops[-1].i
        return ops
    horder = [(C2 * kp + e) * 4 + tt for kp in range(6) for tt in range(4) for e in range(C2)]
    def pre2():
        ops = []
        for st in range(6):
            if st < NSLOT: ops += dma2(st, 0, 0)
            for b in horder[12*st:12*st+12]: ops += hload(b)
        return ops
    s.raw(f"""
    s_mul_i32 s{st1}, s{sw}, {CTSZ}
    s_add_u32 s{st1}, s{st1}, {CT}
    v_lshl_add_u32 v{a0}, v{va}, 6, v{vg16}
    v_add_u32 v{a0}, s{st1}, v{a0}
    v_lshl_add_u32 v{a1}, v{va}, 5, v{vg16}
    v_lshlrev_b32 v{a3}, 4, v{vg16}
    v_lshl_add_u32 v{a2}, v{va}, 4, v{a3}
    v_cmp_gt_u32 vcc, 32, v{vl}
    v_cndmask_b32 v{a1}, v{a2}, v{a1}, vcc
    v_add_u32 v{a1}, s{st1}, v{a1}
    v_lshl_add_u32 v{a2}, v{va}, 3, v{a3}
    v_add_u32 v{a2}, s{st1}, v{a2}
    v_cmp_eq_u32 vcc, 0, v{vl}
    v_lshlrev_b32 v{vDs}, 16, v{vDs}
    v_cndmask_b32 v{vDs}, 0, v{vDs}, vcc
    v_add_f32 v{CACC}, v{CACC}, v{vDs}
    ds_write_b128 v{a0}, {vr(CACC,4)} offset:0
    ds_write_b128 v{a1}, {vr(CACC+4,4)} offset:1024
    ds_write_b64 v{a2}, {vr(CACC+8,2)} offset:2048
    ds_write_b64 v{a2}, {vr(CACC+10,2)} offset:{2048+128}
    v_lshl_add_u32 v{a0}, v{vl}, 4, s{st1}
    v_lshl_add_u32 v{a1}, v{vl}, 3, s{st1}
    v_cvt_pk_bf16_f32 v{a3}, 0, v{CACC}
    """)
    K = FRG
    r0 = s.emit(f"ds_read_b128 {vr(K,4)}, v{a0} offset:0"); r0 = s.emit(f"ds_read_b32 v{K+4}, v{a0} offset:16")
    rs = []
    for g_ in range(3):
        s.emit(f"ds_read_b64 {vr(K+8+4*g_,2)}, v{a1} offset:{1024+512*g_}")
        rs.append(s.emit(f"ds_read_b32 v{K+10+4*g_}, v{a1} offset:{1024+512*g_+8}"))
    s.raw(f"""
    v_readfirstlane_b32 s{st1}, v{a3}
    v_lshl_add_u32 v{a0}, v{vl}, 3, v{vKT}
    v_lshl_add_u32 v{a1}, v{vl}, 4, v{vKT}
    v_lshl_add_u32 v{a2}, v{vl}, 5, v{vKT}
    v_mov_b32 v{a3}, s{st1}
    ds_write_b32 v{vKT}, v{a3} offset:{4160+28}
    """)
    emit_now(hchk[1:2]); s.emit("s_nop 1"); emit_now(hchk[2:])
    m2ops = pre2()
    def some(n):
        k = 0
        while k < n and m2ops:
            o = m2ops.pop(0); emit_now([o])
            if o.i.kind in ("dma", "vload"): k += 1
    O = FRG + 32
    def expand(kb, pat0, pat1, addr, dw):
        n = len(pat0)
        some(P["hexp"] // 4)
        for cp, pat in enumerate((pat0, pat1)):
            o = O + 8 * cp + (16 if n == 8 or kb == K + 8 else 0)
            for i, (x, y) in enumerate(pat): s.emit(f"v_cvt_pk_bf16_f32 v{o+i}, v{kb+x}, v{kb+y}")
            if n == 2: s.emit(f"ds_write_b64 v{addr}, {vr(o,2)} offset:{cp*4160 + 4*dw}")
            else:
                for h in range(n // 4): s.emit(f"ds_write_b128 v{addr}, {vr(o+4*h,4)} offset:{cp*4160 + 4*dw + 16*h}")
    s.need(r0); expand(K, [(0,1),(2,3)], [(1,2),(3,4)], a0, 8)
    s.need(rs[0]); expand(K+8, [(0,0),(1,2)], [(0,1),(2,2)], a0, 8+128)
    s.need(rs[1]); expand(K+12, [(0,0),(0,1),(1,1),(2,2)], [(0,0),(1,1),(1,2),(2,2)], a1, 8+256)
    s.need(rs[2]); expand(K+16, [(0,0),(0,0),(0,1),(1,1),(1,1),(1,1),(2,2),(2,2)], [(0,0),(0,0),(1,1),(1,1),(1,1),(1,2),(2,2),(2,2)], a2, 8+512)
    stamp()
    G = Gapper(s)
    G.add_flow(m2ops)
    def reads(st):
        b = FRG + 64 * (st % 2); L = []
        for i in range(8):
            for h in range(2):
                o = (i % 2) * 128 + 16 * st + 2 * h
                L.append(f"ds_read2_b32 {vr(b + 4*i + 2*h, 2)}, v{vKA + i//2} offset0:{o} offset1:{o+1}")
            L.append(f"ds_read_b128 {vr(b + 32 + 4*i, 4)}, v{vUA} offset:{512*(7-i) + 64*st}")
        return L
    cur = [s.emit(x) for x in reads(0)]
    s.need(cur[2])
    for st in range(8):
        b = FRG + 64 * (st % 2)
        nx = reads(st + 1) if st < 7 else []
        nxt = []; m = 0
        for J in range(8):
            for q in range(J + 1):
                acc = vr(CACC + 4 * J, 4)
                txt = f"v_mfma_f32_16x16x32_bf16 {acc}, {vr(b + 4*q, 4)}, {vr(b + 32 + 4*(J-q), 4)}, {'0' if st == 0 and q == 0 else acc}"
                scal = []
                if q == J:
                    if J < 7: scal.append(lambda z, i=cur[3*(J+1)+2]: z.need(i))
                    elif st < 7: scal.append(lambda z, nxt=nxt: z.need(nxt[2]))
                rd = nx[len(nxt)] if (m % 3 != 0 and len(nxt) < len(nx)) else None
                r = G.mfma(txt, scal, rd, nofill=(rd is None and m % 3 != 0))
                if r is not None: nxt.append(r)
                m += 1
        cur = nxt
    left = G.drain()
    print(f"conv: drained={left}", file=sys.stderr)
    s.raw(f"""
    s_mul_i32 s{st0}, s{sc_}, 3
    s_add_u32 s{st0}, s{st0}, s{sw}
    s_lshl_b32 s{st0}, s{st0}, 12
    s_add_u32 s{st0}, s{st0}, {WS_Y}
    v_bfe_u32 v{vb}, v{vl}, 4, 1
    v_lshlrev_b32 v{vb}, 9, v{vb}
    v_lshl_add_u32 v{vb}, v{va}, 5, v{vb}
    v_lshrrev_b32 v{a0}, 5, v{vl}
    v_lshl_add_u32 v{vb}, v{a0}, 4, v{vb}
    """)
    YO = W + 64
    for p in range(4):
        for h in range(4): s.emit(f"v_cvt_pk_bf16_f32 v{YO+4*p+h}, v{CACC+8*p+2*h}, v{CACC+8*p+2*h+1}")
    for p in range(4):
        o = YO + 4 * p
        s.emit(f"v_permlane16_swap_b32 v{o}, v{o+2}"); s.emit(f"v_permlane16_swap_b32 v{o+1}, v{o+3}")
        yI = s.emit(f"buffer_store_dwordx4 {vr(o,4)}, v{vb}, s[{sWS}:{sWS+3}], s{st0} offen offset:{1024*p} sc1")
    s.emit("KF_g2:")
    stamp()
    s2 = Stream(); keep = s; s = s2
    s.raw(f"""
    KF_noconv_wg:
    s_waitcnt vmcnt(0)
    {hflag}
    s_branch KF_nc
    KF_noconv_wave:
    s_barrier
    KF_nc:
    """)
    sv = (dict(dmaI2), dict(hI))
    ck = check_ops("h2", hpoll, vF, "1")
    emit_now(ck[:2]); s.emit("s_nop 1"); emit_now(ck[2:])
    emit_now(pre2())
    s.raw("""
    s_waitcnt vmcnt(0)
    s_branch KF_g2
    """)
    s = keep; dmaI2.update(sv[0]); hI.update(sv[1])
    ACC = W; FR = W + 144
    vOne2 = 240; vZero2 = 241; vF2 = 242; vc = 243; vG = 244; vtok = 247; vOA = 248; vOC = 249; vPA = 250; vPB = 251
    s.raw(f"""
    v_mov_b32 v{vOne2}, 1
    v_mov_b32 v{vZero2}, 0
    v_lshrrev_b32 v{va}, 2, v{vl}
    v_lshlrev_b32 v{va}, 7, v{va}
    v_and_b32 v{vb}, 3, v{vl}
    v_lshl_add_u32 v{va}, v{vb}, 3, v{va}
    v_bfe_u32 v{vb}, v{vl}, 3, 2
    v_lshl_add_u32 v{va}, v{vb}, 5, v{va}
    s_mul_i32 s{st0}, s{skh}, 12288
    v_add_u32 v{vRA}, s{st0}, v{va}
    v_xor_b32 v{vRA+1}, 32, v{vRA}
    v_xor_b32 v{vRA+2}, 64, v{vRA}
    v_xor_b32 v{vRA+3}, 0x60, v{vRA}
    """)
    s.need(dmaI2[0]); s.emit("s_barrier")
    G = Gapper(s)
    groups2 = []
    slots2 = {0: [0,1,2,3], 1: [4,5,6,7], 2: [8]}
    for si, (ch, k) in enumerate(stages2):
        if ch < 2:
            for t in range(4): groups2.append(dict(st=si, t=t, ks0=3*k, ksl=0, acc=slots2[ch][t], C=False))
        else:
            for kp in range(3): groups2.append(dict(st=si, t=0, ks0=9*k + 3*kp, ksl=3*kp, acc=slots2[ch][0], C=True))
    GM = 12; last2 = {}; lastg = {}
    for gi, g in enumerate(groups2): last2[(stages2[g["st"]][0], g["t"])] = gi * GM; lastg[g["st"]] = gi
    barm = {si: (lastg[si] - 1) * GM for si in range(NS2)}
    def read2(gi, q):
        g = groups2[gi]; e, sec = divmod(q, 2)
        dst = FR + GM * (gi % 3) + 4 * e + 2 * sec; off = ((g["st"] % NSLOT) % 2) * SLOT
        if g["C"]: return f"ds_read_b64_tr_b16 {vr(dst,2)}, v{vRC} offset:{off + (g['ksl']+e)*1024 + sec*512}"
        return f"ds_read_b64_tr_b16 {vr(dst,2)}, v{vRA+g['t']} offset:{off + (g['ksl']+e)*4096 + sec*2048}"
    mem = []
    for si in range(NSLOT, NS2): mem += dma2(si, barm[si - NSLOT], P["d2"])
    side = []
    def sraw(text, e=0, deadline=None):
        for x in text.strip().split("\n"):
            x = x.strip()
            if x and not x.startswith(";"):
                o = Op(x, e, deadline=deadline)
                if o.i.kind == "salu":
                    o.i.rd = o.i.rd | {"sccx"}; o.i.wr = o.i.wr | {"sccx"}
                side.append(o)
    sraw(f"""
    s_mul_i32 s{st0}, s{skh}, 9216
    v_add_u32 v{vRC}, s{st0}, v{vPC}
    s_lshl_b32 s{st0}, s{sw}, 13
    s_add_u32 s{st0}, s{st0}, {SCR}
    v_add_u32 v{vSW}, s{st0}, v{vH}
    s_xor_b32 s{st0}, s{sw}, 2
    s_lshl_b32 s{st0}, s{st0}, 13
    s_add_u32 s{st0}, s{st0}, {SCR}
    v_add_u32 v{vSR}, s{st0}, v{vH}
    v_add_u32 v{vPC}, 4096, v{vPC}
    v_lshrrev_b32 v{va}, 1, v{vl}
    v_mul_u32_u24 v{va}, 1152, v{va}
    v_and_b32 v{vb}, 1, v{vl}
    v_lshl_add_u32 v{va}, v{vb}, 4, v{va}
    """, 0, 200)
    for i in range(5):
        sraw(f"""
        s_mul_i32 s{st0}, s{sw}, 5
        s_add_u32 s{st0}, s{st0}, {i}
        s_mul_i32 s{st1}, s{st0}, {32*1152}
        s_add_u32 s{st2}, s{st0}, 7
        s_lshr_b32 s{st2}, s{st2}, 4
        s_mul_i32 s{st2}, s{st2}, {288*1152}
        s_add_u32 s{st1}, s{st1}, s{st2}
        s_add_u32 s{st2}, s{st0}, 14
        s_lshr_b32 s{st2}, s{st2}, 5
        s_lshl_b32 s{st2}, s{st2}, 24
        s_add_u32 s{st1}, s{st1}, s{st2}
        s_sub_u32 s{st1}, s{st1}, {1024*(i%4)}
        v_add_u32 v{vDC+i}, s{st1}, v{va}
        """, 0, 200)
    side.append(Op(f"buffer_store_dword v{vOne2}, v{vZero2}, s[{sWS}:{sWS+3}], s{sFY} offen sc1", barm[4] + 2, needs=lambda: [yI]))
    def A(slot, tt, r): return ACC + 16 * slot + 4 * tt + r
    epi = []
    def send(ch, deadline):
        for t in range(len(slots2[ch])):
            for u in range(2):
                lm = last2[(ch, t)] + C2 * (2 + u) + C2 - 1
                epi.append(Op(f"ds_write_b128 v{vSW}, {vr(A(slots2[ch][t], 2+u, 0), 4)} offset:{(2*t+u)*1024 + (32768 if ch == 2 else 0)}", after=[lm], deadline=deadline))
    def recv(ch, earliest, lag, deadline):
        nt = len(slots2[ch])
        for t in range(nt):
            for u in range(2):
                epi.append(Op(f"ds_read_b128 {vr(A(slots2[ch][t], 2+u, 0), 4)}, v{vSR} offset:{(2*t+u)*1024 + (32768 if ch == 2 else 0)}", earliest, deadline=deadline))
        rds = epi[-2*nt:]
        for t in range(nt):
            for u in range(2):
                sl = slots2[ch][t]; ps = slots2[ch][t & ~1]; rd = rds[2*t+u]
                for r in range(4):
                    epi.append(Op(f"v_add_f32 v{A(sl,2+u,r)}, v{A(sl,u,r)}, v{A(sl,2+u,r)}", earliest + lag, needs=(lambda rd=rd: [rd.i]) if r == 0 else None))
                for h in range(2):
                    epi.append(Op(f"v_cvt_pk_bf16_f32 v{A(ps,u,2*(t&1)+h)}, v{A(sl,2+u,2*h)}, v{A(sl,2+u,2*h+1)}"))
                if ch < 2 and t & 1:
                    epi.append(Op(f"buffer_store_dwordx4 {vr(A(ps,u,0),4)}, v{vH}, s[{sWS}:{sWS+3}], s{sPt+u} offen offset:{(2*ch + t//2)*1024} sc1"))
                if ch == 2:
                    epi.append(Op(f"buffer_store_dwordx2 {vr(A(ps,u,0),2)}, v{vPC}, s[{sWS}:{sWS+3}], s{sPt+u} offen sc1"))
    send(0, barm[6] - 3); recv(0, barm[6], 36, barm[8] - 3)
    lastA = epi[-1]
    send(1, barm[12] - 3); recv(1, barm[12], 24, None)
    vA = ACC; vSel = ACC + 12; vDd = ACC + 24; vTt = ACC + 44
    sT = sHt; su = sHt + 1; sPb = sPp; sOb = sPp + 8
    e3 = barm[8]
    side.append(Op("WAIT", e3, xdeps=[lastA])); gate = side[-1]
    k0 = len(side)
    sraw(f"""
    s_lshr_b32 s{st0}, s2, 5
    s_and_b32 s{st1}, s2, 4
    s_lshl_b32 s{st1}, s{st1}, 1
    s_add_u32 s{st0}, s{st0}, s{st1}
    s_lshl_b32 s{st0}, s{st0}, 2
    s_add_u32 s{st1}, s{st0}, s{sj}
    s_lshl_b32 s{st1}, s{st1}, 2
    s_add_u32 s{st1}, s{st1}, s{skq}
    s_lshl_b32 s{st1}, s{st1}, 7
    s_add_u32 s{sFC}, s{st1}, {WS_FP}
    s_add_u32 s{st0}, s{st0}, s{skq}
    s_lshl_b32 s{sT}, s{st0}, 1
    s_and_b32 s{su}, s{sw}, 1
    v_and_b32 v{vtok}, 15, v{vl}
    s_lshl_b32 s{st0}, s{sj}, 2
    s_add_u32 s{st0}, s{st0}, s{sw}
    s_lshl_b32 s{st0}, s{st0}, 5
    v_add_u32 v{va}, s{st0}, v{vl}
    s_lshl_b32 s{st0}, s{sj}, 4
    s_add_u32 s{st0}, s{st0}, 512
    v_add_u32 v{vb}, s{st0}, v{vtok}
    v_cmp_gt_u32 vcc, 32, v{vl}
    v_cndmask_b32 v{va}, v{vb}, v{va}, vcc
    v_lshlrev_b32 v{vc}, 2, v{va}
    s_mov_b32 s{sFH}, {WS_FY}
    """, e3)
    side += check_ops("y", f"buffer_load_dword v{vF2}, v{vc}, s[{sWS}:{sWS+3}], s{sFH} offen sc1", vF2, "1", e3, barm[10])
    ychk = side[-1]
    sraw(f"""
    s_lshl_b32 s{st0}, s{sT}, 2
    s_add_u32 s{st0}, s{st0}, s{sj}
    s_mul_i32 s{st0}, s{st0}, 4608
    s_add_u32 s{st0}, s{st0}, {WS_P}
    """, e3)
    for k in range(4):
        for u in range(2): sraw(f"s_add_u32 s{sPb+2*k+u}, s{st0}, {k*128*18432 + u*18432}", e3)
    sraw(f"""
    v_lshlrev_b32 v{vPA}, 4, v0
    s_mul_i32 s{st1}, s{su}, 18432
    s_add_u32 s{st1}, s{st1}, 4096
    v_lshl_add_u32 v{vPB}, v{vl}, 3, s{st1}
    v_lshlrev_b32 v{va}, 2, v{vtok}
    s_lshl_b32 s{st0}, s{sT}, 6
    s_add_u32 s{st0}, s{st0}, {WS_G}
    buffer_load_dword v{vG}, v{va}, s[{sWS}:{sWS+3}], s{st0} offen sc1
    buffer_load_dword v{vG+1}, v{va}, s[{sWS}:{sWS+3}], s{st0} offen offset:64 sc1
    s_lshl_b32 s{st1}, s{su}, 6
    s_add_u32 s{st0}, s{st0}, s{st1}
    buffer_load_dword v{vG+2}, v{va}, s[{sWS}:{sWS+3}], s{st0} offen sc1
    v_lshrrev_b32 v{va}, 4, v{vl}
    v_lshlrev_b32 v{va}, 3, v{va}
    v_sub_u32 v{va}, v{vtok}, v{va}
    v_and_b32 v{vb}, 1, v{vl}
    v_lshlrev_b32 v{vb}, 4, v{vb}
    v_mov_b32 v{vTt}, 0x3f80
    v_lshlrev_b32 v{vb}, v{vb}, v{vTt}
    v_ashrrev_i32 v{va}, 1, v{va}
    s_lshl_b32 s{st1}, s{su}, 3
    v_add_u32 v{vTt}, s{st1}, v{va}
    """, e3)
    for u in range(3):
        for i in range(4):
            sraw(f"""v_cmp_eq_i32 vcc, {i - 8*u if u < 2 else i}, v{va if u < 2 else vTt}
            v_cndmask_b32 v{vSel+4*u+i}, 0, v{vb}, vcc""", e3)
    sraw(f"""
    v_mul_u32_u24 v{vOC}, 1152, v{vtok}
    v_bfe_u32 v{vb}, v{vl}, 4, 1
    v_lshl_add_u32 v{vOA}, v{vb}, 5, v{vOC}
    v_lshrrev_b32 v{vb}, 5, v{vl}
    v_lshl_add_u32 v{vOA}, v{vb}, 4, v{vOA}
    v_lshrrev_b32 v{vb}, 4, v{vl}
    v_lshl_add_u32 v{vOC}, v{vb}, 3, v{vOC}
    s_mul_i32 s{st0}, s{sT}, 18432
    s_lshl_b32 s{st1}, s{sj}, 2
    s_add_u32 s{st1}, s{st1}, s{sw}
    s_lshl_b32 s{st1}, s{st1}, 6
    s_add_u32 s{sOb}, s{st1}, s{st0}
    s_add_u32 s{sOb+1}, s{sOb}, 18432
    s_mul_i32 s{st1}, s{su}, 18432
    s_add_u32 s{st0}, s{st0}, s{st1}
    s_lshl_b32 s{st1}, s{sj}, 5
    s_add_u32 s{st0}, s{st0}, s{st1}
    s_add_u32 s{st0}, s{st0}, 1024
    s_lshl_b32 s{st1}, s{skh}, 24
    s_add_u32 s{sOb+2}, s{st0}, s{st1}
    v_and_b32 v{va}, 48, v{vl}
    v_lshl_add_u32 v{va}, v{vtok}, 12, v{va}
    s_lshl_b32 s{st0}, s{sT}, 5
    s_add_u32 s{st0}, s{st0}, {WS_Y}
    s_lshl_b32 s{st1}, s{sj}, 2
    s_add_u32 s{st1}, s{st1}, s{sw}
    s_lshl_b32 s{st1}, s{st1}, 17
    s_add_u32 s{st1}, s{st1}, s{st0}
    """, e3)
    k1 = len(side)
    sraw(f"""
    buffer_load_dwordx4 {vr(vA,4)}, v{va}, s[{sWS}:{sWS+3}], s{st1} offen sc1
    s_add_u32 s{st1}, s{st1}, 65536
    buffer_load_dwordx4 {vr(vA+4,4)}, v{va}, s[{sWS}:{sWS+3}], s{st1} offen sc1
    s_add_u32 s{st1}, s{sj}, 32
    s_lshl_b32 s{st1}, s{st1}, 16
    s_add_u32 s{st1}, s{st1}, s{st0}
    buffer_load_dwordx4 {vr(vA+8,4)}, v{va}, s[{sWS}:{sWS+3}], s{st1} offen sc1
    v_and_b32 v{vc}, 3, v{vl}
    v_lshlrev_b32 v{vc}, 2, v{vc}
    """, e3)
    for o in side[k0:]: o.deps.append(gate)
    for o in side[k1:]: o.deps.append(ychk)
    G.add_flow(mem); G.add_flow(toggles(groups2, GM, vRA, vRC)); G.add_flow(epi); G.add_flow(side)
    engine(G, groups2, C2, FR, A, read2, hI, range(6), dmaI2, NS2, hook=lambda st: stamp() if st % 6 == 5 else None)
    epi2 = epi; epi = []
    send(2, None); G.flows.insert(0, []); G.add_flow(list(epi)); G.flows.insert(0, G.flows.pop())
    left = G.drain()
    s.emit("s_waitcnt lgkmcnt(0)"); s.emit("s_barrier")
    epi = []; recv(2, 0, 0, None); G.add_flow(list(epi)); left += G.drain()
    print(f"gemm2: forced={G.over} drained={left}", file=sys.stderr)
    s.emit("s_waitcnt vmcnt(0)")
    s.emit(f"buffer_store_dword v{vOne2}, v{vZero2}, s[{sWS}:{sWS+3}], s{sFP} offen sc1")
    stamp()
    for u in range(2):
        for t in range(2):
            s.emit(f"v_mfma_f32_16x16x32_bf16 {vr(vDd+8*u+4*t,4)}, {vr(vA+4*t,4)}, {vr(vSel+4*u,4)}, 0")
    s.emit(f"v_mfma_f32_16x16x32_bf16 {vr(vDd+16,4)}, {vr(vA+8,4)}, {vr(vSel+8,4)}, 0")
    ck = check_ops("p", f"buffer_load_dword v{vF2}, v{vc}, s[{sWS}:{sWS+3}], s{sFC} offen sc1", vF2, "1")
    emit_now(ck[:2]); s.emit("s_nop 1"); emit_now(ck[2:])
    vP = ACC + 64; vPCc = ACC + 96
    L = {}
    for u in range(2):
        for k in range(4):
            L[u] = s.emit(f"buffer_load_dwordx4 {vr(vP+16*u+4*k,4)}, v{vPA}, s[{sWS}:{sWS+3}], s{sPb+2*k+u} offen sc1")
    for k in range(4):
        L[2] = s.emit(f"buffer_load_dwordx2 {vr(vPCc+2*k,2)}, v{vPB}, s[{sWS}:{sWS+3}], s{sPb+2*k} offen sc1")
    def combine(src, stride, nd, d, g, o):
        for i in range(nd):
            lo, hi = vTt, vTt + 1
            s.emit(f"v_lshlrev_b32 v{lo}, 16, v{src+i}"); s.emit(f"v_and_b32 v{hi}, s{sHi}, v{src+i}")
            for k in range(1, 4):
                s.emit(f"v_lshlrev_b32 v{vTt+2}, 16, v{src+k*stride+i}"); s.emit(f"v_and_b32 v{vTt+3}, s{sHi}, v{src+k*stride+i}")
                s.emit(f"v_add_f32 v{lo}, v{lo}, v{vTt+2}"); s.emit(f"v_add_f32 v{hi}, v{hi}, v{vTt+3}")
            s.emit(f"v_sub_f32 v{d+2*i}, v{d+2*i}, v{lo}"); s.emit(f"v_sub_f32 v{d+2*i+1}, v{d+2*i+1}, v{hi}")
            s.emit(f"v_fmac_f32 v{lo}, v{g}, v{d+2*i}"); s.emit(f"v_fmac_f32 v{hi}, v{g}, v{d+2*i+1}")
            s.emit(f"v_cvt_pk_bf16_f32 v{o+i}, v{lo}, v{hi}")
    for u in range(2):
        o = vSel + 4 * u
        s.need(L[u])
        combine(vP + 16 * u, 4, 4, vDd + 8 * u, vG + u, o)
        s.emit(f"v_permlane16_swap_b32 v{o}, v{o+2}"); s.emit(f"v_permlane16_swap_b32 v{o+1}, v{o+3}")
        s.emit(f"buffer_store_dwordx4 {vr(o,4)}, v{vOA}, s[{sO}:{sO+3}], s{sOb+u} offen")
    s.need(L[2])
    combine(vPCc, 2, 2, vDd + 16, vG + 2, vSel + 8)
    s.emit(f"buffer_store_dwordx2 {vr(vSel+8,2)}, v{vOC}, s[{sO}:{sO+3}], s{sOb+2} offen")
    if stamps:
        s.emit("s_waitcnt vmcnt(0)")
        stamp()
        s.emit("s_waitcnt lgkmcnt(0)")
        s.raw(f"""
        s_lshl_b32 s{st0}, s2, 8
        s_lshl_b32 s{st1}, s{sw}, 6
        s_add_u32 s{st0}, s{st0}, s{st1}
        v_mov_b32 v{va}, s{st0}
        """)
        for i in range(nst[0]):
            s.emit(f"v_mov_b32 v{vb}, s{sSt+2*i}")
            s.emit(f"buffer_store_dword v{vb}, v{va}, s[{sWS}:{sWS+3}], 0 offen offset:{4*i}")
    s.emit("s_endpgm")
    body = finish(s, "main") + finish(s2, "noconv")
    for x in slow: body += "\n".join(l.strip() for l in x.strip().split("\n")) + "\n"
    body += "KF_done:\n"
    print(f"sgprs={S.n} stamps={nst[0]}", file=sys.stderr)
    return single(body, 256, 256, LDS, vgpr=512, sgpr=102, accum=256)

if __name__ == "__main__":
    open("f1.s", "w").write(gen())
    open("f1s.s", "w").write(gen(stamps=True))
```
